```python
import torch

def _softmax(x, axis=-1):
    return torch.softmax(x, dim=axis)
def _gelu(x):
    return torch.nn.functional.gelu(x, approximate="tanh")
def _silu(x):
    return torch.nn.functional.silu(x)
def _sigmoid(x):
    return torch.sigmoid(x)
def _layernorm(x, axis=-1, eps=1e-5):
    m = x.mean(dim=axis, keepdim=True)
    v = x.var(dim=axis, keepdim=True, unbiased=False)
    return (x - m) / torch.sqrt(v + eps)
def _scatter_add(tgt, idx, src, axis=0):
    return tgt.clone().index_add_(axis, idx, src)
def _segment_sum(src, seg, n):
    out = torch.zeros((n,) + src.shape[1:], dtype=src.dtype)
    return out.index_add_(0, seg, src)
def _pad(x, pw):
    flat = tuple(v for pair in reversed(pw) for v in pair)
    return torch.nn.functional.pad(x, flat)

kernel_name = 'standalone__paged_block_table_kv_radixattention__decode'

def setup_inputs():

    _w = (lambda a: (lambda t: t.to(torch.bfloat16) if t.is_floating_point() else t)(torch.as_tensor(a)))
    B, H, Hkv, Dh = 2, 16, 8, 256
    Lk = 32768
    bs = 16
    nb = max(2, Lk // bs)
    P = max(1, nb // 2)
    n_phys = P + B * (nb - P)
    shared = torch.arange(P, dtype=torch.int64)
    priv = P + torch.arange(B * (nb - P), dtype=torch.int64).reshape(B, nb - P)
    bt = torch.cat([torch.tile(shared[None, :], (B, 1)), priv], dim=1)
    ctx = nb * bs - (torch.arange(1, B + 1, dtype=torch.int64) * 2654435761) % max(1, (nb * bs - P * bs) // 2)
    return {
        "q": _w((lambda *s: torch.randn(*s, dtype=torch.bfloat16) * 0.8)(B, H, Dh)),
        "k_cache": _w((lambda *s: torch.randn(*s, dtype=torch.bfloat16) * 0.8)(n_phys, bs, Hkv, Dh)),
        "v_cache": _w((lambda *s: torch.randn(*s, dtype=torch.bfloat16) * 0.05)(n_phys, bs, Hkv, Dh)),
        "block_table": _w(bt.to(torch.int64)),
        "ctx_lens": _w(torch.as_tensor(ctx).to(torch.int64)),
    }

def reference(q, k_cache, v_cache, block_table, ctx_lens):
    B, H, Dh = q.shape
    n_phys, bs, Hkv, _ = k_cache.shape
    nb = block_table.shape[1]
    Lk = nb * bs
    rep = H // Hkv
    k = k_cache[block_table].reshape(B, Lk, Hkv, Dh)
    v = v_cache[block_table].reshape(B, Lk, Hkv, Dh)
    k = (lambda x, n, axis: torch.repeat_interleave(x, n, dim=axis))(k, rep, axis=2)
    v = (lambda x, n, axis: torch.repeat_interleave(x, n, dim=axis))(v, rep, axis=2)
    scores = torch.einsum("bhd,bkhd->bhk", q, k) * (Dh ** -0.5)
    pos = torch.arange(Lk)
    valid = pos[None, :] < ctx_lens[:, None]
    scores = torch.where(valid[:, None, :], scores, -1e9)
    p = _softmax(scores, axis=-1)
    return torch.einsum("bhk,bkhd->bhd", p, v)
```

```python
import re

TRANS = ("v_exp_f32", "v_log_f32", "v_rcp_f32", "v_rsq_f32", "v_sqrt_f32", "v_sin_f32", "v_cos_f32")

def regs_of(tok):
    tok = tok.strip()
    neg = tok.startswith("-")
    if neg: tok = tok[1:]
    m = re.fullmatch(r"abs\((.*)\)", tok) or re.fullmatch(r"\|(.*)\|", tok)
    if m: tok = m.group(1)
    m = re.fullmatch(r"([vsa])\[(\d+):(\d+)\]", tok)
    if m: return [(m.group(1), i) for i in range(int(m.group(2)), int(m.group(3)) + 1)]
    m = re.fullmatch(r"([vsa])(\d+)", tok)
    if m: return [(m.group(1), int(m.group(2)))]
    if tok == "vcc": return [("s", "vcc_lo"), ("s", "vcc_hi")]
    if tok in ("vcc_lo", "vcc_hi"): return [("s", tok)]
    if tok == "exec": return [("s", "exec_lo"), ("s", "exec_hi")]
    if tok in ("exec_lo", "exec_hi"): return [("s", tok)]
    if tok == "m0": return [("s", "m0")]
    return []

class Ins:
    def __init__(self, text):
        self.text = text
        t = text.split(";")[0].strip()
        self.op = t.split()[0]
        rest = t[len(self.op):].strip()
        parts = [p.strip() for p in re.split(r",(?![^\[]*\])", rest)] if rest else []
        self.mods = ""
        if parts:
            last = parts[-1].split(None, 1)
            if len(last) > 1 and not last[0].startswith("hwreg"):
                parts[-1] = last[0]; self.mods = last[1]
        self.ops = parts
        op = self.op
        self.is_mfma = op.startswith("v_mfma")
        self.is_valu = op.startswith("v_") and not self.is_mfma
        self.is_trans = any(op.startswith(x) for x in TRANS)
        self.is_dpp = ("_dpp" in op) or ("quad_perm" in self.mods) or ("row_" in self.mods)
        self.is_permlane = op.startswith("v_permlane")
        self.is_lane = op.startswith("v_readlane") or op.startswith("v_readfirstlane") or op.startswith("v_writelane")
        self.is_vmem = op.startswith("buffer_") or op.startswith("global_") or op.startswith("flat_")
        self.is_ds = op.startswith("ds_")
        self.is_salu = op.startswith("s_")
        self.is_store = self.is_vmem and ("store" in op or "atomic" in op)
        self.passes = 0
        if self.is_mfma:
            self.passes = 2 if "4x4x4" in op else 4 if "16x16" in op else 8
        R = [regs_of(p) for p in parts]
        w, r = [], []
        if self.is_mfma:
            w = R[0]; self.A = R[1]; self.B = R[2]; self.C = R[3]; r = R[1] + R[2] + R[3]
        elif self.is_permlane and "swap" in op:
            w = R[0] + R[1]; r = R[0] + R[1]
        elif op.startswith("v_cmp"):
            w = R[0]; r = sum(R[1:], [])
            if op.startswith("v_cmpx"): w = w + regs_of("exec")
        elif self.is_valu:
            w = R[0]; r = sum(R[1:], [])
            if op.startswith(("v_add_co", "v_sub_co", "v_addc_co", "v_subb_co")):
                w = R[0] + R[1]; r = sum(R[2:], [])
            if op.startswith(("v_fmac", "v_writelane", "v_dot2c")) or self.is_dpp:
                r = r + R[0]
            if op.startswith("v_cndmask") and len(parts) == 3:
                r = r + regs_of("vcc")
        elif self.is_vmem:
            if "load" in op and " lds" not in (" " + self.mods) and "load_lds" not in op:
                w = R[0]; r = sum(R[1:], [])
            elif "atomic" in op and "sc0" in self.mods:
                if op.startswith("buffer_"):
                    w = R[0]; r = sum(R, [])
                else:
                    w = R[0]; r = sum(R[1:], [])
            else:
                r = sum(R, [])
        elif self.is_ds:
            if op.startswith(("ds_read", "ds_bpermute", "ds_permute", "ds_swizzle")) or "_rtn" in op:
                w = R[0]; r = sum(R[1:], [])
            else:
                r = sum(R, [])
        elif self.is_salu:
            if op.startswith(("s_cmp", "s_cbranch", "s_branch", "s_waitcnt", "s_nop", "s_barrier", "s_endpgm", "s_setprio", "s_sleep", "s_bitcmp")):
                r = sum(R, [])
            else:
                w = R[0] if R else []; r = sum(R[1:], [])
                if "saveexec" in op: w = w + regs_of("exec"); r = r + regs_of("exec")
        self.w = set(w); self.r = set(r)
        self.states = 1
        if op == "s_nop": self.states = int(parts[0]) + 1
        self.lanesel = set()
        if op.startswith("v_readlane") or op.startswith("v_writelane"):
            self.lanesel = set(R[2]) if len(R) > 2 else set()
        self.store_data = set()
        if self.is_vmem and "store" in op and ("x4" in op or "x3" in op):
            self.store_data = set(R[0]) if op.startswith("buffer_") else set(R[1])

def need(p, c):
    n = 0
    pv = {x for x in p.w if x[0] in "va"}
    ps = {x for x in p.w if x[0] == "s"}
    if p.is_valu:
        if pv & c.r:
            if c.is_dpp: n = max(n, 2)
            if c.is_permlane: n = max(n, 2)
            if c.op.startswith(("v_readlane", "v_readfirstlane")): n = max(n, 1)
            if c.is_mfma: n = max(n, 2)
            if p.is_trans and (c.is_valu or c.is_mfma) and not c.is_trans: n = max(n, 1)
            if p.is_trans and c.is_trans: n = max(n, 1)
        if ps:
            if c.is_vmem and (ps & c.r): n = max(n, 5)
            if c.lanesel & ps: n = max(n, 4)
            if (c.is_valu or c.is_mfma) and (ps & c.r): n = max(n, 2)
            if c.is_salu and (ps & c.r): n = max(n, 1)
            ex = set(regs_of("exec"))
            if ps & ex:
                if c.is_dpp: n = max(n, 5)
                if c.is_lane or c.is_permlane or c.is_mfma: n = max(n, 4)
    if p.is_mfma:
        k = {2: 0, 4: 1, 8: 2}[p.passes]
        if c.is_mfma:
            if pv & set(c.A + c.B): n = max(n, [5, 8, 12][k])
            if pv & set(c.C):
                if set(c.C) == pv and c.passes == p.passes: n = max(n, [2, 0, 0][k])
                else: n = max(n, [4, 6, 10][k])
            elif pv & c.w: n = max(n, [5, 8, 12][k])
        elif c.is_valu or c.is_vmem or c.is_ds:
            if pv & (c.r | c.w): n = max(n, [5, 8, 12][k])
        if c.is_valu and (set(p.C) & c.w): n = max(n, [1, 3, 7][k])
    if p.store_data and (p.store_data & c.w) and (c.is_valu or c.is_mfma or c.is_vmem or c.is_ds):
        n = max(n, 2)
    if p.is_salu and ("s", "m0") in p.w and (c.is_vmem and ("lds" in c.mods or "load_lds" in c.op)):
        n = max(n, 1)
    return n

class Asm:
    def __init__(self):
        self.lines = []
        self.hist = []
        self.nops = 0
    def raw(self, s):
        self.lines.append(s)
    def label(self, name, barrier_pad=True):
        self.lines.append(name + ":")
    def __call__(self, text):
        for t in text.split("\n"):
            t = t.strip()
            if not t or t.startswith(";"):
                if t: self.lines.append("    " + t)
                continue
            if t.endswith(":"):
                self.label(t[:-1]); continue
            self.emit(Ins(t))
    def emit(self, c):
        dist = 0; pad = 0
        for p in reversed(self.hist):
            nd = need(p, c)
            if nd > dist: pad = max(pad, nd - dist)
            dist += p.states
            if dist >= 24: break
        while pad > 0:
            k = min(pad, 16)
            nop = Ins(f"s_nop {k-1}")
            self.lines.append(nop); self.hist.append(nop); self.nops += 1
            pad -= k
        self.lines.append(c); self.hist.append(c)
        self.hist = self.hist[-40:]
    def check_backedge(self, head_label):
        idx = self.lines.index(head_label + ":")
        body = [x for x in self.lines[idx:] if isinstance(x, Ins)]
        hist = list(self.hist)
        for c in body[:30]:
            dist = 0
            for p in reversed(hist):
                nd = need(p, c)
                assert nd <= dist, f"back-edge hazard: {p.text} -> {c.text} need {nd} have {dist}"
                dist += p.states
                if dist >= 24: break
            hist.append(c)
    def check_jump(self, target_label, hist):
        idx = self.lines.index(target_label + ":")
        body = [x for x in self.lines[idx:] if isinstance(x, Ins)]
        hist = list(hist)
        for c in body[:30]:
            dist = 0
            for p in reversed(hist):
                nd = need(p, c)
                assert nd <= dist, f"jump hazard: {p.text} -> {c.text} need {nd} have {dist}"
                dist += p.states
                if dist >= 24: break
            hist.append(c)
    def text(self):
        return "\n".join(("    " + x.text) if isinstance(x, Ins) else x for x in self.lines) + "\n"
```

```python
import sys, math
from asmlib import Asm
KNAME = "standalone__paged_block_table_kv_radixattention__decode_kernel"
HDR = open("standalone__paged_block_table_kv_radixattention__decode.s.ref").read().split("; Override launch")[0]
C_SCALE = 0x3db8aa3b
import struct
assert abs(struct.unpack("<f", struct.pack("<I", C_SCALE))[0] - math.log2(math.e)/16) < 1e-8

vKo, vVo = 2, 3
vQ = 4
vD0 = 12
vM, vMC, vL, vAl = 18, 19, 20, 21
vAq = 22
vP = 26
vS = 28
vT = 44
vK = 52
vV = 84
vA = 116
vNeg = 180
vX = 181
sJ, sHead, sSl = 36, 37, 38
sOff = 48
sMask = 56
sIdx, sIt = 72, 73
sModd, sMhi = 74, 76
sSelLo, sSelHi, sC = 78, 79, 80
sN, sS, sNb0, sNb1, sC0, sC1 = 81, 82, 83, 84, 85, 86
OOB = 0xF0000000

def kslot(e, h): return vK + (2*e + h)*4
def vslot(h, e): return vV + (4*h + e)*4

def gen(R=5, pol="nt", stamps=False, lds=98304):
    a = Asm()
    a.raw(HDR.rstrip("\n"))
    a.raw(f"; @launch kernel={KNAME} grid=(256,1,1) block=(256,1,1) lds={lds}")
    a.raw(f"; @launch kernel=combine_kernel grid=(32,1,1) block=(64,1,1) lds=0")
    a.raw('.amdgcn_target "amdgcn-amd-amdhsa--gfx950"\n.text')
    a.raw(f".globl {KNAME}\n.p2align 8\n.type {KNAME},@function\n{KNAME}:")
    if stamps: a("s_memrealtime s[88:89]")
    a(f"""
    s_load_dwordx16 s[4:19], s[0:1], 0
    s_cmp_ge_u32 s2, 256
    s_cbranch_scc1 L_end
    v_lshrrev_b32 v{vX}, 6, v0
    v_and_b32 v1, 63, v0
    s_lshr_b32 s{sHead}, s2, 3
    v_readfirstlane_b32 s{sJ}, v{vX}
    s_and_b32 s{sHead}, s{sHead}, 7
    s_and_b32 s{sSl}, s2, 7
    s_lshr_b32 s3, s2, 6
    s_lshl_b32 s3, s3, 3
    s_add_u32 s{sSl}, s{sSl}, s3
    s_lshl_b32 s39, s{sHead}, 9
    v_lshrrev_b32 v{vX}, 4, v1
    v_bfe_u32 v{vX+1}, v1, 2, 2
    v_and_b32 v{vX+2}, 3, v1
    v_lshlrev_b32 v{vX+3}, 6, v{vX}
    v_lshl_add_u32 v{vKo}, v{vX+1}, 12, v{vX+3}
    v_lshl_add_u32 v{vKo}, v{vX+2}, 4, v{vKo}
    v_add_u32 v{vKo}, s39, v{vKo}
    v_and_b32 v{vX+4}, 15, v1
    v_lshlrev_b32 v{vVo}, 12, v{vX}
    v_lshl_add_u32 v{vVo}, v{vX+4}, 4, v{vVo}
    v_add_u32 v{vVo}, s39, v{vVo}
    v_lshl_add_u32 v{vX+5}, v{vX+1}, 4, v{vX+3}
    v_lshrrev_b32 v{vX+6}, 1, v{vX+2}
    v_lshl_add_u32 v{vX+5}, v{vX+6}, 13, v{vX+5}
    v_and_b32 v{vX+6}, 1, v1
    v_lshl_add_u32 v{vX+5}, v{vX+6}, 9, v{vX+5}
    s_lshl_b32 s39, s39, 1
    v_add_u32 v{vX+5}, s39, v{vX+5}
    v_lshlrev_b32 v{vX+6}, 5, v0
    v_add_u32 v{vX+7}, 0x2000, v{vX+6}
    s_lshl_b32 s3, s{sSl}, 2
    s_waitcnt lgkmcnt(0)
    s_load_dwordx2 s[40:41], s[12:13], 0
    s_add_u32 s44, s10, s3
    s_addc_u32 s45, s11, 0
    s_load_dword s{sOff}, s[44:45], 0
    s_load_dword s{sOff+1}, s[44:45], 128
    s_load_dword s{sOff+2}, s[44:45], 256
    s_load_dword s{sOff+3}, s[44:45], 384
    global_load_dwordx4 v[{vK}:{vK+3}], v{vX+6}, s[10:11]
    """)
    a.lines.pop(); a.hist.pop()
    vTb = 192
    a(f"""
    global_load_dwordx4 v[{vTb}:{vTb+3}], v{vX+6}, s[10:11]
    global_load_dwordx4 v[{vTb+4}:{vTb+7}], v{vX+6}, s[10:11] offset:16
    global_load_dwordx4 v[{vTb+8}:{vTb+11}], v{vX+7}, s[10:11]
    global_load_dwordx4 v[{vTb+12}:{vTb+15}], v{vX+7}, s[10:11] offset:16
    global_load_dwordx4 v[{vQ}:{vQ+3}], v{vX+5}, s[4:5]
    global_load_dwordx4 v[{vQ+4}:{vQ+7}], v{vX+5}, s[4:5] offset:256
    s_mov_b32 s20, s6
    s_and_b32 s21, s7, 0xffff
    s_mov_b32 s22, 201326592
    s_mov_b32 s23, 0x20000
    s_mov_b32 s24, s8
    s_and_b32 s25, s9, 0xffff
    s_mov_b32 s26, 201326592
    s_mov_b32 s27, 0x20000
    s_lshl_b32 s46, s{sJ}, 14
    s_waitcnt lgkmcnt(0)
    """)
    a(f"""
    s_mov_b32 s64, 0x33333333
    s_mov_b32 s65, 0x33333333
    s_mov_b32 s66, 0xcccccccc
    s_mov_b32 s67, 0xcccccccc
    s_cmp_le_i32 s40, 0
    s_cselect_b32 s{sC0}, 0x8000, s40
    s_cselect_b64 s[64:65], 0, s[64:65]
    s_cmp_le_i32 s41, 0
    s_cselect_b32 s{sC1}, 0x8000, s41
    s_cselect_b64 s[66:67], 0, s[66:67]
    s_or_b64 s[64:65], s[64:65], s[66:67]
    s_min_u32 s{sC0}, s{sC0}, 0x8000
    s_min_u32 s{sC1}, s{sC1}, 0x8000
    s_add_u32 s{sNb0}, s{sC0}, 15
    s_lshr_b32 s{sNb0}, s{sNb0}, 4
    s_add_u32 s{sNb1}, s{sC1}, 15
    s_lshr_b32 s{sNb1}, s{sNb1}, 4
    """)
    for e in range(4):
        a(f"s_lshl_b32 s{sOff+e}, s{sOff+e}, 16\ns_add_u32 s{sOff+e}, s{sOff+e}, s46")
    def load(x):
        if x < 8:
            e, h = x >> 1, x & 1
            r = kslot(e, h)
            a(f"buffer_load_dwordx4 v[{r}:{r+3}], v{vKo}, s[20:23], s{sOff+e} offen offset:{h*256} {pol}")
        else:
            h, e = (x - 8) >> 2, (x - 8) & 3
            r = vslot(h, e)
            a(f"buffer_load_dwordx4 v[{r}:{r+3}], v{vVo}, s[24:27], s{sOff+e} offen offset:{h*256} {pol}")
    a(f"""
    s_add_u32 s3, s{sSl}, 96
    s_cmp_lt_u32 s3, s{sNb0}
    s_cselect_b32 s47, 1, 0
    s_cbranch_scc0 L_noearly
    """)
    for x in range(R): load(x)
    a(f"s_waitcnt vmcnt({R})\ns_branch L_early_done\nL_noearly:\ns_waitcnt vmcnt(0)\nL_early_done:")
    if stamps: a("s_memrealtime s[90:91]")
    a(f"""
    ds_write_b128 v{vX+6}, v[{vTb}:{vTb+3}]
    ds_write_b128 v{vX+6}, v[{vTb+4}:{vTb+7}] offset:16
    ds_write_b128 v{vX+7}, v[{vTb+8}:{vTb+11}]
    ds_write_b128 v{vX+7}, v[{vTb+12}:{vTb+15}] offset:16
    """)
    mk = [56, 58, 60, 62, 92, 94, 96, 98]
    for k in range(8):
        a(f"v_cmp_eq_u32 s[{mk[k]}:{mk[k]+1}], v{vTb+k}, v{vTb+8+k}")
    for k in range(1, 8):
        a(f"s_and_b64 s[{mk[k]}:{mk[k]+1}], s[{mk[k]}:{mk[k]+1}], s[{mk[k-1]}:{mk[k-1]+1}]")
    a(f"s_ff0_i32_b64 s3, s[{mk[7]}:{mk[7]+1}]")
    a(f"s_lshl_b32 s39, s{sJ}, 6\ns_add_u32 s39, s39, s3\ns_lshl_b32 s39, s39, 3")
    for k in range(7):
        a(f"s_bitcmp1_b64 s[{mk[k]}:{mk[k]+1}], s3\ns_addc_u32 s39, s39, 0")
    a(f"""
    s_cmp_lt_i32 s3, 0
    s_cselect_b32 s39, 2048, s39
    s_lshl_b32 s3, s{sJ}, 2
    v_mov_b32 v{vX}, s3
    v_mov_b32 v{vX+1}, s39
    ds_write_b32 v{vX}, v{vX+1} offset:16384
    """)
    for i in range(64): a(f"v_mov_b32 v{vA+i}, 0")
    for i in range(32): a(f"v_mov_b32 v{vV+i}, 0")
    a(f"""
    v_mov_b32 v{vP}, 0
    v_mov_b32 v{vP+1}, 0
    v_mov_b32 v{vL}, 0
    v_mov_b32 v{vM}, 0xf149f2ca
    v_mov_b32 v{vNeg}, 0xff800000
    s_mov_b32 s{sC}, {C_SCALE}
    v_mul_f32 v{vMC}, s{sC}, v{vM}
    s_mov_b32 s{sModd}, 0xf0f0f0f0
    s_mov_b32 s{sModd+1}, 0xf0f0f0f0
    s_mov_b32 s{sMhi}, 0xff00ff00
    s_mov_b32 s{sMhi+1}, 0xff00ff00
    s_mov_b32 s{sSelLo}, 0x05040100
    s_mov_b32 s{sSelHi}, 0x07060302
    """)
    for i in range(8): a(f"v_cndmask_b32 v{vQ+i}, 0, v{vQ+i}, s[64:65]")
    a(f"""
    v_mov_b32 v{vX}, 0
    s_waitcnt lgkmcnt(0)
    s_barrier
    ds_read_b128 v[{vTb}:{vTb+3}], v{vX} offset:16384
    s_waitcnt lgkmcnt(0)
    v_min_u32 v{vTb}, v{vTb}, v{vTb+1}
    v_min3_u32 v{vTb}, v{vTb}, v{vTb+2}, v{vTb+3}
    s_min_u32 s3, s{sNb0}, s{sNb1}
    v_readfirstlane_b32 s{sS}, v{vTb}
    s_min_u32 s{sS}, s{sS}, s3
    s_add_u32 s{sN}, s{sNb0}, s{sNb1}
    s_sub_u32 s{sN}, s{sN}, s{sS}
    s_sub_u32 s39, s{sS}, s{sNb0}
    s_lshl_b32 s68, s{sJ}, 2
    s_sub_u32 s69, s{sC0}, s68
    s_sub_u32 s70, s{sC1}, s68
    """)
    for r in range(2):
        b = vTb + r*8
        a(f"""
        v_lshlrev_b32 v{b}, 5, v1
        s_add_u32 s3, s{sSl}, {r*2048}
        v_add_u32 v{b}, s3, v{b}
        v_cmp_gt_u32 s[{56+r*4}:{57+r*4}], s{sNb0}, v{b}
        v_add_u32 v{b+1}, s39, v{b}
        v_cmp_gt_u32 s[{58+r*4}:{59+r*4}], s{sN}, v{b}
        v_cndmask_b32 v{b+1}, v{b+1}, v{b}, s[{56+r*4}:{57+r*4}]
        v_min_u32 v{b+2}, 2047, v{b+1}
        v_lshlrev_b32 v{b+2}, 2, v{b+2}
        v_add_u32 v{b+4}, 0x2000, v{b+2}
        v_cndmask_b32 v{b+2}, v{b+4}, v{b+2}, s[{56+r*4}:{57+r*4}]
        ds_read_b32 v{b+3}, v{b+2}
        """)
    for r in range(2):
        b = vTb + r*8
        isA = f"s[{56+r*4}:{57+r*4}]"; valid = f"s[{58+r*4}:{59+r*4}]"
        d = vD0 + 3*r
        a(f"""
        v_lshlrev_b32 v{b+4}, 4, v{b+1}
        v_sub_u32 v{b+5}, s69, v{b+4}
        v_sub_u32 v{b+6}, s70, v{b+4}
        v_cmp_gt_u32 vcc, s{sS}, v{b}
        v_med3_i32 v{b+5}, v{b+5}, 0, 4
        v_med3_i32 v{b+6}, v{b+6}, 0, 4
        s_andn2_b64 s[92:93], {valid}, {isA}
        s_or_b64 s[92:93], s[92:93], vcc
        v_cndmask_b32 v{b+5}, 0, v{b+5}, {isA}
        v_cndmask_b32 v{b+6}, 0, v{b+6}, s[92:93]
        v_lshlrev_b32 v{b+4}, 4, v{b+5}
        v_lshlrev_b32 v{b+7}, 4, v{b+6}
        v_mov_b32 v{vX}, -1
        v_mov_b32 v{vX+1}, -1
        v_lshlrev_b64 v[{vX+3}:{vX+4}], v{b+4}, v[{vX+1}:{vX+2}]
        """)
        a.lines.pop(); a.hist.pop(); a.lines.pop(); a.hist.pop(); a.lines.pop(); a.hist.pop()
        for (src, pat, first) in ((b+5, 0x33333333, True), (b+6, 0xcccccccc, False)):
            a(f"""
            v_cmp_lt_u32 s[94:95], 0, v{src}
            v_cmp_lt_u32 s[96:97], 1, v{src}
            v_cmp_lt_u32 s[98:99], 2, v{src}
            v_cmp_lt_u32 vcc, 3, v{src}
            v_mov_b32 v{vX}, {pat & 0xffff}
            v_mov_b32 v{vX+1}, {pat}
            v_cndmask_b32 v{vX+2}, 0, v{vX}, s[94:95]
            v_cndmask_b32 v{vX+2}, v{vX+2}, v{vX+1}, s[96:97]
            v_cndmask_b32 v{vX+3}, 0, v{vX}, s[98:99]
            v_cndmask_b32 v{vX+3}, v{vX+3}, v{vX+1}, vcc
            """)
            if first:
                a(f"v_mov_b32 v{d+1}, v{vX+2}\nv_mov_b32 v{d+2}, v{vX+3}")
            else:
                a(f"v_or_b32 v{d+1}, v{d+1}, v{vX+2}\nv_or_b32 v{d+2}, v{d+2}, v{vX+3}")
        a(f"""
        s_waitcnt lgkmcnt({1-r})
        v_lshlrev_b32 v{b+3}, 16, v{b+3}
        v_add_u32 v{b+3}, s46, v{b+3}
        v_cmp_ne_u32 vcc, 0, v{d+1}
        v_mov_b32 v{vX}, {OOB}
        v_cndmask_b32 v{d}, v{vX}, v{b+3}, vcc
        """)
    a(f"""
    s_sub_u32 s3, s{sN}, s{sSl}
    s_add_u32 s3, s3, 31
    s_ashr_i32 s3, s3, 5
    s_max_i32 s3, s3, 1
    s_add_u32 s3, s3, 3
    s_lshr_b32 s{sIt}, s3, 2
    s_mov_b32 s{sIdx}, 0
    """)
    def fetch_desc():
        for e in range(4):
            if e: a(f"s_add_u32 s{sIdx}, s{sIdx}, 1")
            a(f"v_readlane_b32 s{sOff+e}, v{vD0}, s{sIdx}")
            a(f"v_readlane_b32 s{sMask+2*e}, v{vD0+1}, s{sIdx}")
            a(f"v_readlane_b32 s{sMask+2*e+1}, v{vD0+2}, s{sIdx}")
        a(f"s_add_u32 s{sIdx}, s{sIdx}, 1")
    fetch_desc()
    if stamps: a("s_memrealtime s[92:93]")
    a(f"s_cmp_eq_u32 s47, 1\ns_nop 4\ns_cbranch_scc1 L_x{R}")
    hist_jump = list(a.hist)
    def QK(e):
        d = vS + 4*e
        a(f"v_mfma_f32_16x16x32_bf16 v[{d}:{d+3}], v[{kslot(e,0)}:{kslot(e,0)+3}], v[{vQ}:{vQ+3}], 0")
        a(f"v_mfma_f32_16x16x32_bf16 v[{d}:{d+3}], v[{kslot(e,1)}:{kslot(e,1)+3}], v[{vQ+4}:{vQ+7}], v[{d}:{d+3}]")
    def RED1(e):
        d = vS + 4*e
        a(f"""
        v_cndmask_b32 v{d}, v{d}, v{d+1}, s[{sModd}:{sModd+1}]
        v_cndmask_b32 v{d+2}, v{d+2}, v{d+3}, s[{sModd}:{sModd+1}]
        v_cndmask_b32 v{d}, v{d}, v{d+2}, s[{sMhi}:{sMhi+1}]
        """)
    def RED2(e):
        d = vS + 4*e
        a(f"v_add_f32_dpp v{d+1}, v{d}, v{d} row_ror:4 row_mask:0xf bank_mask:0xf")
    def RED3(e):
        d = vS + 4*e
        a(f"v_add_f32_dpp v{d}, v{d+1}, v{d+1} row_ror:8 row_mask:0xf bank_mask:0xf")
        a(f"v_cndmask_b32 v{d}, v{vNeg}, v{d}, s[{sMask+2*e}:{sMask+2*e+1}]")
    def SM():
        T = [vS + 4*e for e in range(4)]
        a(f"""
        v_max3_f32 v{vM}, v{vM}, v{T[0]}, v{T[1]}
        v_max3_f32 v{vM}, v{vM}, v{T[2]}, v{T[3]}
        v_mul_f32 v{vX}, s{sC}, v{vM}
        v_sub_f32 v{vAl}, v{vMC}, v{vX}
        v_fma_f32 v{T[0]}, v{T[0]}, s{sC}, -v{vX}
        v_fma_f32 v{T[1]}, v{T[1]}, s{sC}, -v{vX}
        v_fma_f32 v{T[2]}, v{T[2]}, s{sC}, -v{vX}
        v_fma_f32 v{T[3]}, v{T[3]}, s{sC}, -v{vX}
        v_exp_f32 v{vAl}, v{vAl}
        v_exp_f32 v{T[0]}, v{T[0]}
        v_exp_f32 v{T[1]}, v{T[1]}
        v_exp_f32 v{T[2]}, v{T[2]}
        v_exp_f32 v{T[3]}, v{T[3]}
        v_mov_b32 v{vMC}, v{vX}
        v_mov_b32_dpp v{vAq}, v{vAl} quad_perm:[0,0,0,0] row_mask:0xf bank_mask:0xf
        v_mov_b32_dpp v{vAq+1}, v{vAl} quad_perm:[1,1,1,1] row_mask:0xf bank_mask:0xf
        v_mov_b32_dpp v{vAq+2}, v{vAl} quad_perm:[2,2,2,2] row_mask:0xf bank_mask:0xf
        v_mov_b32_dpp v{vAq+3}, v{vAl} quad_perm:[3,3,3,3] row_mask:0xf bank_mask:0xf
        v_add_f32 v{vX}, v{T[0]}, v{T[1]}
        v_add_f32 v{vX+1}, v{T[2]}, v{T[3]}
        v_cvt_pk_bf16_f32 v{vP}, v{T[0]}, v{T[1]}
        v_cvt_pk_bf16_f32 v{vP+1}, v{T[2]}, v{T[3]}
        v_add_f32 v{vX}, v{vX}, v{vX+1}
        v_fma_f32 v{vL}, v{vL}, v{vAl}, v{vX}
        """)
    def RS(t0, t1):
        for t in range(t0, t1):
            r = vA + 4*t
            a(f"v_pk_mul_f32 v[{r}:{r+1}], v[{r}:{r+1}], v[{vAq}:{vAq+1}]")
            a(f"v_pk_mul_f32 v[{r+2}:{r+3}], v[{r+2}:{r+3}], v[{vAq+2}:{vAq+3}]")
    def PV(h, d0, d1):
        def perm(dd):
            t = vT + 2*(dd & 3); rr = dd >> 1; sel = sSelHi if dd & 1 else sSelLo
            a(f"v_perm_b32 v{t}, v{vslot(h,1)+rr}, v{vslot(h,0)+rr}, s{sel}")
            a(f"v_perm_b32 v{t+1}, v{vslot(h,3)+rr}, v{vslot(h,2)+rr}, s{sel}")
        def mm(dd):
            t = vT + 2*(dd & 3); r = vA + 4*(8*h + dd)
            a(f"v_mfma_f32_4x4x4_16b_bf16 v[{r}:{r+3}], v[{vP}:{vP+1}], v[{t}:{t+1}], v[{r}:{r+3}]")
        perm(d0)
        for dd in range(d0, d1):
            if dd + 1 < d1: perm(dd + 1)
            mm(dd)
    sched = {x: [] for x in range(16)}
    for e in range(4):
        sched[2*e + 1 + R].append(lambda e=e: QK(e))
    for e in range(3):
        sched[2*e + 2 + R].append(lambda e=e: (RED1(e), RED2(e), RED3(e)))
    xs = 8 + R
    assert xs <= 15
    sched[xs].append(lambda: (RED1(3), RED2(3), RED3(3), SM()))
    if xs + 2 <= 15:
        sched[xs+1].append(lambda: RS(0, 8)); sched[xs+2].append(lambda: RS(8, 16))
    elif xs + 1 <= 15:
        sched[xs+1].append(lambda: RS(0, 16))
    else:
        sched[xs].append(lambda: RS(0, 16))
    p0 = (11 + R) - 16; p1 = (15 + R) - 16
    assert p0 >= 0 and p1 + 1 < 8
    sched[p0].insert(0, lambda: PV(0, 0, 4)); sched[p0+1].insert(0, lambda: PV(0, 4, 8))
    sched[p1].insert(0, lambda: PV(1, 0, 4)); sched[p1+1].insert(0, lambda: PV(1, 4, 8))
    a.raw(".p2align 6")
    a("L_loop:")
    for x in range(16):
        a(f"L_x{x}:")
        a(f"s_waitcnt vmcnt({R-1})")
        load(x)
        for t in sched[x]: t()
    a(f"""
    s_cmp_lg_u32 s{sIdx}, 64
    s_cbranch_scc1 L_noswap
    v_mov_b32 v{vD0}, v{vD0+3}
    v_mov_b32 v{vD0+1}, v{vD0+4}
    v_mov_b32 v{vD0+2}, v{vD0+5}
    s_mov_b32 s{sIdx}, 0
    L_noswap:
    """)
    fetch_desc()
    a(f"s_sub_u32 s{sIt}, s{sIt}, 1\ns_cmp_lg_u32 s{sIt}, 0\ns_cbranch_scc1 L_loop")
    a.check_backedge("L_loop")
    a.check_jump(f"L_x{R}", hist_jump)
    a("s_waitcnt vmcnt(4)")
    PV(0, 0, 8)
    a("s_waitcnt vmcnt(0)")
    PV(1, 0, 8)
    if stamps: a("s_memrealtime s[94:95]")
    x0, x1 = vX, vX+1
    a(f"""
    v_mov_b32 v{x0}, v{vMC}
    v_mov_b32 v{x1}, v{vMC}
    v_permlane32_swap_b32 v{x0}, v{x1}
    v_max_f32 v{x0}, v{x0}, v{x1}
    v_mov_b32 v{x1}, v{x0}
    v_permlane16_swap_b32 v{x0}, v{x1}
    v_max_f32 v{vM}, v{x0}, v{x1}
    v_sub_f32 v{vAl}, v{vMC}, v{vM}
    v_exp_f32 v{vAl}, v{vAl}
    v_mul_f32 v{x0}, v{vL}, v{vAl}
    v_mov_b32_dpp v{vAq}, v{vAl} quad_perm:[0,0,0,0] row_mask:0xf bank_mask:0xf
    v_mov_b32_dpp v{vAq+1}, v{vAl} quad_perm:[1,1,1,1] row_mask:0xf bank_mask:0xf
    v_mov_b32_dpp v{vAq+2}, v{vAl} quad_perm:[2,2,2,2] row_mask:0xf bank_mask:0xf
    v_mov_b32_dpp v{vAq+3}, v{vAl} quad_perm:[3,3,3,3] row_mask:0xf bank_mask:0xf
    v_mov_b32 v{x1}, v{x0}
    v_permlane32_swap_b32 v{x0}, v{x1}
    v_add_f32 v{x0}, v{x0}, v{x1}
    v_mov_b32 v{x1}, v{x0}
    v_permlane16_swap_b32 v{x0}, v{x1}
    v_add_f32 v{vL}, v{x0}, v{x1}
    """)
    RS(0, 16)
    for t in range(8):
        for q in range(4):
            a(f"v_permlane32_swap_b32 v{vA+4*t+q}, v{vA+4*(t+8)+q}")
    for t in range(8):
        for q in range(4):
            a(f"v_add_f32 v{vA+4*t+q}, v{vA+4*t+q}, v{vA+4*(t+8)+q}")
    for t in range(4):
        for q in range(4):
            a(f"v_permlane16_swap_b32 v{vA+4*t+q}, v{vA+4*(t+4)+q}")
    vW = vK
    for q in range(4):
        for t in range(4):
            a(f"v_add_f32 v{vW+4*q+t}, v{vA+4*t+q}, v{vA+4*(t+4)+q}")
    a(f"""
    v_lshrrev_b32 v{x0}, 5, v1
    v_lshlrev_b32 v{x0}, 9, v{x0}
    v_and_b32 v{x1}, 15, v1
    v_lshl_add_u32 v{x0}, v{x1}, 5, v{x0}
    v_bfe_u32 v{x1}, v1, 4, 1
    v_lshl_add_u32 v{x0}, v{x1}, 4, v{x0}
    s_lshl_b32 s3, s{sJ}, 12
    v_add_u32 v{x0}, s3, v{x0}
    """)
    for q in range(4):
        a(f"ds_write_b128 v{x0}, v[{vW+4*q}:{vW+4*q+3}] offset:{20480 + q*1024}")
    a(f"""
    v_lshlrev_b32 v{x1}, 4, v1
    s_lshl_b32 s3, s{sJ}, 2
    v_add_u32 v{vX+2}, s3, v{x1}
    s_mov_b64 exec, 0xf
    ds_write_b32 v{vX+2}, v{vM} offset:16448
    ds_write_b32 v{vX+2}, v{vL} offset:16512
    s_mov_b64 exec, -1
    s_lshl_b32 s3, s{sJ}, 4
    v_mov_b32 v{vX+2}, s3
    s_lshl_b32 s3, s{sJ}, 10
    v_add_u32 v{vX+3}, s3, v{x1}
    s_waitcnt lgkmcnt(0)
    s_barrier
    ds_read_b128 v[{vS}:{vS+3}], v{vX+2} offset:16448
    ds_read_b128 v[{vS+4}:{vS+7}], v{vX+2} offset:16512
    """)
    for w in range(4):
        a(f"ds_read_b128 v[{vV+4*w}:{vV+4*w+3}], v{vX+3} offset:{20480 + w*4096}")
    a(f"""
    s_lshl_b32 s3, s{sHead}, 2
    s_add_u32 s3, s3, s{sJ}
    s_lshl_b32 s3, s3, 5
    s_add_u32 s3, s3, s{sSl}
    s_lshl_b32 s39, s3, 10
    v_add_u32 v{x1}, s39, v{x1}
    s_lshl_b32 s39, s3, 3
    s_add_u32 s39, s39, 0x100000
    v_mov_b32 v{x0}, s39
    s_waitcnt lgkmcnt(4)
    v_max_f32 v{vM}, v{vS}, v{vS+1}
    v_max3_f32 v{vM}, v{vM}, v{vS+2}, v{vS+3}
    """)
    for w in range(4): a(f"v_sub_f32 v{vS+w}, v{vS+w}, v{vM}")
    for w in range(4): a(f"v_exp_f32 v{vS+w}, v{vS+w}")
    a(f"v_mul_f32 v{vM+1}, v{vS}, v{vS+4}")
    for w in range(1, 4): a(f"v_fmac_f32 v{vM+1}, v{vS+w}, v{vS+4+w}")
    a("s_waitcnt lgkmcnt(0)")
    for t in range(4): a(f"v_mul_f32 v{vW+t}, v{vS}, v{vV+t}")
    for w in range(1, 4):
        for t in range(4): a(f"v_fmac_f32 v{vW+t}, v{vS+w}, v{vV+4*w+t}")
    a(f"""
    global_store_dwordx4 v{x1}, v[{vW}:{vW+3}], s[18:19]
    s_mov_b64 exec, 1
    global_store_dwordx2 v{x0}, v[{vM}:{vM+1}], s[18:19]
    """)
    if stamps:
        a(f"""
        s_waitcnt vmcnt(0)
        s_memrealtime s[96:97]
        s_getreg_b32 s98, hwreg(HW_REG_XCC_ID)
        s_getreg_b32 s99, hwreg(HW_REG_HW_ID)
        s_lshl_b32 s3, s2, 2
        s_add_u32 s3, s3, s{sJ}
        s_lshl_b32 s3, s3, 6
        s_add_u32 s3, s3, 0x20000000
        v_mov_b32 v{x0}, s3
        s_waitcnt lgkmcnt(0)
        """)
        for i in range(12): a(f"v_mov_b32 v{vV+i}, s{88+i}")
        a(f"""
        global_store_dwordx4 v{x0}, v[{vV}:{vV+3}], s[18:19]
        global_store_dwordx4 v{x0}, v[{vV+4}:{vV+7}], s[18:19] offset:16
        global_store_dwordx4 v{x0}, v[{vV+8}:{vV+11}], s[18:19] offset:32
        """)
    a("L_end:\ns_endpgm")
    a.raw(".globl combine_kernel\n.p2align 8\n.type combine_kernel,@function\ncombine_kernel:")
    a.hist = []
    a(f"""
    s_load_dwordx2 s[4:5], s[0:1], 40
    s_load_dwordx2 s[6:7], s[0:1], 56
    s_cmp_ge_u32 s2, 32
    s_cbranch_scc1 L_end2
    s_lshl_b32 s3, s2, 15
    v_lshlrev_b32 v1, 4, v0
    v_add_u32 v1, s3, v1
    v_and_b32 v2, 31, v0
    v_lshlrev_b32 v2, 3, v2
    s_lshl_b32 s3, s2, 8
    s_add_u32 s3, s3, 0x100000
    v_add_u32 v2, s3, v2
    s_waitcnt lgkmcnt(0)
    global_load_dwordx2 v[4:5], v2, s[6:7]
    """)
    for s in range(32):
        if s % 4 == 0 and s: a("v_add_u32 v1, 0x1000, v1")
        a(f"global_load_dwordx4 v[{8+4*s}:{11+4*s}], v1, s[6:7] offset:{(s%4)*1024}")
    a(f"""
    s_lshr_b32 s8, s2, 2
    s_lshl_b32 s8, s8, 10
    s_and_b32 s9, s2, 1
    s_lshl_b32 s9, s9, 9
    s_add_u32 s8, s8, s9
    s_bfe_u32 s9, s2, 0x10001
    s_lshl_b32 s9, s9, 13
    s_add_u32 s8, s8, s9
    v_lshlrev_b32 v3, 3, v0
    v_add_u32 v3, s8, v3
    s_waitcnt vmcnt(32)
    v_mov_b32 v6, v4
    """)
    for k in (1, 2, 4, 8):
        a(f"v_max_f32_dpp v6, v6, v6 row_ror:{k} row_mask:0xf bank_mask:0xf")
    a("""
    v_mov_b32 v7, v6
    v_permlane16_swap_b32 v6, v7
    v_max_f32 v6, v6, v7
    v_sub_f32 v4, v4, v6
    v_exp_f32 v4, v4
    v_mul_f32 v5, v5, v4
    """)
    for k in (1, 2, 4, 8):
        a(f"v_add_f32_dpp v5, v5, v5 row_ror:{k} row_mask:0xf bank_mask:0xf")
    a("""
    v_mov_b32 v7, v5
    v_permlane16_swap_b32 v5, v7
    v_add_f32 v5, v5, v7
    v_rcp_f32 v5, v5
    v_mul_f32 v4, v4, v5
    """)
    for s in range(32): a(f"v_readlane_b32 s{16+s}, v4, {s}")
    for s in range(32):
        a(f"s_waitcnt vmcnt({31-s})")
        for t in range(4):
            if s == 0: a(f"v_mul_f32 v{140+t}, s16, v{8+t}")
            else: a(f"v_fmac_f32 v{140+t}, s{16+s}, v{8+4*s+t}")
    a("""
    v_cvt_pk_bf16_f32 v144, v140, v141
    v_cvt_pk_bf16_f32 v145, v142, v143
    global_store_dwordx2 v3, v[144:145], s[4:5]
    L_end2:
    s_endpgm
    """)
    def kd(name, nv, ns):
        a.raw(f""".amdhsa_kernel {name}
  .amdhsa_next_free_vgpr {nv}
  .amdhsa_next_free_sgpr {ns}
  .amdhsa_accum_offset {(nv+3)//4*4}
  .amdhsa_group_segment_fixed_size 0
  .amdhsa_kernarg_size 64
  .amdhsa_user_sgpr_count 2
  .amdhsa_user_sgpr_kernarg_segment_ptr 1
  .amdhsa_system_sgpr_workgroup_id_x 1
  .amdhsa_float_denorm_mode_32 3
.end_amdhsa_kernel""")
    a.raw('.section .rodata,"a"\n.p2align 6')
    kd(KNAME, 208, 102)
    a.raw(".p2align 6")
    kd("combine_kernel", 148, 56)
    return a.text()

if __name__ == "__main__":
    out = sys.argv[1]
    kw = eval("dict(" + (sys.argv[2] if len(sys.argv) > 2 else "") + ")")
    open(out, "w").write(gen(**kw))
```

```python
from asmlib import Asm
def diag_kernel(a, nrec, k, kind, rel_own=False, base=20000, extra=None, scale=1):
    a.raw(".globl diag_kernel\n.p2align 8\n.type diag_kernel,@function\ndiag_kernel:")
    a.hist = []
    per = nrec // 64
    a(f"""
    s_load_dwordx2 s[6:7], s[0:1], 56
    s_cmp_ge_u32 s2, 1
    s_cbranch_scc1 L_end3
    v_lshlrev_b32 v1, 6, v0
    v_add_u32 v1, 0x20000000, v1
    s_waitcnt lgkmcnt(0)
    """)
    for i in range(per):
        a(f"global_load_dword v{8+i}, v1, s[6:7] sc0 sc1")
        a(f"global_load_dword v{40+i}, v1, s[6:7] offset:{8*k} sc0 sc1")
        a("v_add_u32 v1, 0x1000, v1")
    if extra is not None:
        a(f"v_mov_b32 v2, {extra}\nglobal_load_dword v4, v2, s[6:7] sc0 sc1")
    a("s_waitcnt vmcnt(0)")
    a(f"v_mov_b32 v3, v8")
    for i in range(1, per): a(f"v_min_u32 v3, v3, v{8+i}")
    a("s_nop 1\nv_readlane_b32 s10, v3, 0")
    for l in range(1, 64): a(f"v_readlane_b32 s11, v3, {l}\ns_min_u32 s10, s10, s11")
    for i in range(per):
        if rel_own: a(f"v_sub_u32 v{40+i}, v{40+i}, v{8+i}")
        else: a(f"v_subrev_u32 v{40+i}, s10, v{40+i}")
    op = {"max": "max_u32", "min": "min_u32", "mean": "add_u32", "zero": "add_u32", "single": "add_u32"}[kind]
    a("v_mov_b32 v3, v40")
    for i in range(1, per): a(f"v_{op} v3, v3, v{40+i}")
    a("s_nop 1\nv_readlane_b32 s12, v3, 0")
    for l in range(1, 64): a(f"v_readlane_b32 s11, v3, {l}\ns_{op} s12, s12, s11")
    if kind == "mean":
        import math
        a(f"s_lshr_b32 s12, s12, {int(math.log2(nrec))}")
    if kind == "zero": a("s_mov_b32 s12, 0")
    if kind == "single":
        a("v_readfirstlane_b32 s12, v4\ns_nop 1\ns_sub_u32 s12, s12, s10")
    a(f"""
    s_mul_i32 s12, s12, {scale}
    s_min_u32 s12, s12, 50000
    s_add_u32 s12, s12, {base}
    L_spin:
    s_memrealtime s[14:15]
    s_waitcnt lgkmcnt(0)
    s_sub_u32 s13, s14, s10
    s_cmp_lt_u32 s13, s12
    s_cbranch_scc1 L_spin
    L_end3:
    s_endpgm
    """)
```

```python
import sys, math
from asmlib import Asm
KNAME = "standalone__paged_block_table_kv_radixattention__decode_kernel"
HDR = open("standalone__paged_block_table_kv_radixattention__decode.s.ref").read().split("; Override launch")[0]
C_SCALE = 0x3db8aa3b
import struct
assert abs(struct.unpack("<f", struct.pack("<I", C_SCALE))[0] - math.log2(math.e)/16) < 1e-8

vKo, vVo = 2, 3
vQ = 4
vD0 = 12
vM, vMC, vL, vAl = 18, 19, 20, 21
vAq = 22
vP = 26
vS = 28
vT = 44
vK = 52
vV = 84
vA = 116
vNeg = 180
vX = 181
sJ, sHead, sSl = 36, 37, 38
sOff = 48
sMask = 56
sIdx, sIt = 72, 73
sModd, sMhi = 74, 76
sSelLo, sSelHi, sC = 78, 79, 80
sN, sS, sNb0, sNb1, sC0, sC1 = 81, 82, 83, 84, 85, 86
OOB = 0xF0000000

def kslot(e, h): return vK + (2*e + h)*4
def vslot(h, e): return vV + (4*h + e)*4

def gen(R=5, pol="nt", stamps=False, lds=98304, diag=None):
    a = Asm()
    a.raw(HDR.rstrip("\n"))
    a.raw(f"; @launch kernel={KNAME} grid=(256,1,1) block=(256,1,1) lds={lds}")
    a.raw(f"; @launch kernel=combine_kernel grid=(32,1,1) block=(64,1,1) lds=0")
    if diag: a.raw("; @launch kernel=diag_kernel grid=(1,1,1) block=(64,1,1) lds=0")
    a.raw('.amdgcn_target "amdgcn-amd-amdhsa--gfx950"\n.text')
    a.raw(f".globl {KNAME}\n.p2align 8\n.type {KNAME},@function\n{KNAME}:")
    if stamps: a("s_memrealtime s[88:89]")
    a(f"""
    s_load_dwordx16 s[4:19], s[0:1], 0
    s_cmp_ge_u32 s2, 256
    s_cbranch_scc1 L_end
    v_lshrrev_b32 v{vX}, 6, v0
    v_and_b32 v1, 63, v0
    s_lshr_b32 s{sHead}, s2, 3
    v_readfirstlane_b32 s{sJ}, v{vX}
    s_and_b32 s{sHead}, s{sHead}, 7
    s_and_b32 s{sSl}, s2, 7
    s_lshr_b32 s3, s2, 6
    s_lshl_b32 s3, s3, 3
    s_add_u32 s{sSl}, s{sSl}, s3
    s_lshl_b32 s39, s{sHead}, 9
    v_lshrrev_b32 v{vX}, 4, v1
    v_bfe_u32 v{vX+1}, v1, 2, 2
    v_and_b32 v{vX+2}, 3, v1
    v_lshlrev_b32 v{vX+3}, 6, v{vX}
    v_lshl_add_u32 v{vKo}, v{vX+1}, 12, v{vX+3}
    v_lshl_add_u32 v{vKo}, v{vX+2}, 4, v{vKo}
    v_add_u32 v{vKo}, s39, v{vKo}
    v_and_b32 v{vX+4}, 15, v1
    v_lshlrev_b32 v{vVo}, 12, v{vX}
    v_lshl_add_u32 v{vVo}, v{vX+4}, 4, v{vVo}
    v_add_u32 v{vVo}, s39, v{vVo}
    v_lshl_add_u32 v{vX+5}, v{vX+1}, 4, v{vX+3}
    v_lshrrev_b32 v{vX+6}, 1, v{vX+2}
    v_lshl_add_u32 v{vX+5}, v{vX+6}, 13, v{vX+5}
    v_and_b32 v{vX+6}, 1, v1
    v_lshl_add_u32 v{vX+5}, v{vX+6}, 9, v{vX+5}
    s_lshl_b32 s39, s39, 1
    v_add_u32 v{vX+5}, s39, v{vX+5}
    v_lshlrev_b32 v{vX+6}, 5, v0
    v_add_u32 v{vX+7}, 0x2000, v{vX+6}
    s_lshl_b32 s3, s{sSl}, 2
    s_waitcnt lgkmcnt(0)
    s_load_dwordx2 s[40:41], s[12:13], 0
    s_add_u32 s44, s10, s3
    s_addc_u32 s45, s11, 0
    s_load_dword s{sOff}, s[44:45], 0
    s_load_dword s{sOff+1}, s[44:45], 128
    s_load_dword s{sOff+2}, s[44:45], 256
    s_load_dword s{sOff+3}, s[44:45], 384
    global_load_dwordx4 v[{vK}:{vK+3}], v{vX+6}, s[10:11]
    """)
    a.lines.pop(); a.hist.pop()
    vTb = 192
    a(f"""
    global_load_dwordx4 v[{vTb}:{vTb+3}], v{vX+6}, s[10:11]
    global_load_dwordx4 v[{vTb+4}:{vTb+7}], v{vX+6}, s[10:11] offset:16
    global_load_dwordx4 v[{vTb+8}:{vTb+11}], v{vX+7}, s[10:11]
    global_load_dwordx4 v[{vTb+12}:{vTb+15}], v{vX+7}, s[10:11] offset:16
    global_load_dwordx4 v[{vQ}:{vQ+3}], v{vX+5}, s[4:5]
    global_load_dwordx4 v[{vQ+4}:{vQ+7}], v{vX+5}, s[4:5] offset:256
    s_mov_b32 s20, s6
    s_and_b32 s21, s7, 0xffff
    s_mov_b32 s22, 201326592
    s_mov_b32 s23, 0x20000
    s_mov_b32 s24, s8
    s_and_b32 s25, s9, 0xffff
    s_mov_b32 s26, 201326592
    s_mov_b32 s27, 0x20000
    s_lshl_b32 s46, s{sJ}, 14
    s_waitcnt lgkmcnt(0)
    """)
    a(f"""
    s_mov_b32 s64, 0x33333333
    s_mov_b32 s65, 0x33333333
    s_mov_b32 s66, 0xcccccccc
    s_mov_b32 s67, 0xcccccccc
    s_cmp_le_i32 s40, 0
    s_cselect_b32 s{sC0}, 0x8000, s40
    s_cselect_b64 s[64:65], 0, s[64:65]
    s_cmp_le_i32 s41, 0
    s_cselect_b32 s{sC1}, 0x8000, s41
    s_cselect_b64 s[66:67], 0, s[66:67]
    s_or_b64 s[64:65], s[64:65], s[66:67]
    s_min_u32 s{sC0}, s{sC0}, 0x8000
    s_min_u32 s{sC1}, s{sC1}, 0x8000
    s_add_u32 s{sNb0}, s{sC0}, 15
    s_lshr_b32 s{sNb0}, s{sNb0}, 4
    s_add_u32 s{sNb1}, s{sC1}, 15
    s_lshr_b32 s{sNb1}, s{sNb1}, 4
    """)
    for e in range(4):
        a(f"s_lshl_b32 s{sOff+e}, s{sOff+e}, 16\ns_add_u32 s{sOff+e}, s{sOff+e}, s46")
    def load(x):
        if x < 8:
            e, h = x >> 1, x & 1
            r = kslot(e, h)
            a(f"buffer_load_dwordx4 v[{r}:{r+3}], v{vKo}, s[20:23], s{sOff+e} offen offset:{h*256} {pol}")
        else:
            h, e = (x - 8) >> 2, (x - 8) & 3
            r = vslot(h, e)
            a(f"buffer_load_dwordx4 v[{r}:{r+3}], v{vVo}, s[24:27], s{sOff+e} offen offset:{h*256} {pol}")
    a(f"""
    s_add_u32 s3, s{sSl}, 96
    s_cmp_lt_u32 s3, s{sNb0}
    s_cselect_b32 s47, 1, 0
    s_cbranch_scc0 L_noearly
    """)
    for x in range(R): load(x)
    a(f"s_waitcnt vmcnt({R})\ns_branch L_early_done\nL_noearly:\ns_waitcnt vmcnt(0)\nL_early_done:")
    if stamps: a("s_memrealtime s[90:91]")
    a(f"""
    ds_write_b128 v{vX+6}, v[{vTb}:{vTb+3}]
    ds_write_b128 v{vX+6}, v[{vTb+4}:{vTb+7}] offset:16
    ds_write_b128 v{vX+7}, v[{vTb+8}:{vTb+11}]
    ds_write_b128 v{vX+7}, v[{vTb+12}:{vTb+15}] offset:16
    """)
    mk = [56, 58, 60, 62, 92, 94, 96, 98]
    for k in range(8):
        a(f"v_cmp_eq_u32 s[{mk[k]}:{mk[k]+1}], v{vTb+k}, v{vTb+8+k}")
    for k in range(1, 8):
        a(f"s_and_b64 s[{mk[k]}:{mk[k]+1}], s[{mk[k]}:{mk[k]+1}], s[{mk[k-1]}:{mk[k-1]+1}]")
    a(f"s_ff0_i32_b64 s3, s[{mk[7]}:{mk[7]+1}]")
    a(f"s_lshl_b32 s39, s{sJ}, 6\ns_add_u32 s39, s39, s3\ns_lshl_b32 s39, s39, 3")
    for k in range(7):
        a(f"s_bitcmp1_b64 s[{mk[k]}:{mk[k]+1}], s3\ns_addc_u32 s39, s39, 0")
    a(f"""
    s_cmp_lt_i32 s3, 0
    s_cselect_b32 s39, 2048, s39
    s_lshl_b32 s3, s{sJ}, 2
    v_mov_b32 v{vX}, s3
    v_mov_b32 v{vX+1}, s39
    ds_write_b32 v{vX}, v{vX+1} offset:16384
    """)
    for i in range(64): a(f"v_mov_b32 v{vA+i}, 0")
    for i in range(32): a(f"v_mov_b32 v{vV+i}, 0")
    a(f"""
    v_mov_b32 v{vP}, 0
    v_mov_b32 v{vP+1}, 0
    v_mov_b32 v{vL}, 0
    v_mov_b32 v{vM}, 0xf149f2ca
    v_mov_b32 v{vNeg}, 0xff800000
    s_mov_b32 s{sC}, {C_SCALE}
    v_mul_f32 v{vMC}, s{sC}, v{vM}
    s_mov_b32 s{sModd}, 0xf0f0f0f0
    s_mov_b32 s{sModd+1}, 0xf0f0f0f0
    s_mov_b32 s{sMhi}, 0xff00ff00
    s_mov_b32 s{sMhi+1}, 0xff00ff00
    s_mov_b32 s{sSelLo}, 0x05040100
    s_mov_b32 s{sSelHi}, 0x07060302
    """)
    for i in range(8): a(f"v_cndmask_b32 v{vQ+i}, 0, v{vQ+i}, s[64:65]")
    a(f"""
    v_mov_b32 v{vX}, 0
    s_waitcnt lgkmcnt(0)
    s_barrier
    ds_read_b128 v[{vTb}:{vTb+3}], v{vX} offset:16384
    s_waitcnt lgkmcnt(0)
    v_min_u32 v{vTb}, v{vTb}, v{vTb+1}
    v_min3_u32 v{vTb}, v{vTb}, v{vTb+2}, v{vTb+3}
    s_min_u32 s3, s{sNb0}, s{sNb1}
    v_readfirstlane_b32 s{sS}, v{vTb}
    s_min_u32 s{sS}, s{sS}, s3
    s_add_u32 s{sN}, s{sNb0}, s{sNb1}
    s_sub_u32 s{sN}, s{sN}, s{sS}
    s_sub_u32 s39, s{sS}, s{sNb0}
    s_lshl_b32 s68, s{sJ}, 2
    s_sub_u32 s69, s{sC0}, s68
    s_sub_u32 s70, s{sC1}, s68
    """)
    for r in range(2):
        b = vTb + r*8
        a(f"""
        v_lshlrev_b32 v{b}, 5, v1
        s_add_u32 s3, s{sSl}, {r*2048}
        v_add_u32 v{b}, s3, v{b}
        v_cmp_gt_u32 s[{56+r*4}:{57+r*4}], s{sNb0}, v{b}
        v_add_u32 v{b+1}, s39, v{b}
        v_cmp_gt_u32 s[{58+r*4}:{59+r*4}], s{sN}, v{b}
        v_cndmask_b32 v{b+1}, v{b+1}, v{b}, s[{56+r*4}:{57+r*4}]
        v_min_u32 v{b+2}, 2047, v{b+1}
        v_lshlrev_b32 v{b+2}, 2, v{b+2}
        v_add_u32 v{b+4}, 0x2000, v{b+2}
        v_cndmask_b32 v{b+2}, v{b+4}, v{b+2}, s[{56+r*4}:{57+r*4}]
        ds_read_b32 v{b+3}, v{b+2}
        """)
    for r in range(2):
        b = vTb + r*8
        isA = f"s[{56+r*4}:{57+r*4}]"; valid = f"s[{58+r*4}:{59+r*4}]"
        d = vD0 + 3*r
        a(f"""
        v_lshlrev_b32 v{b+4}, 4, v{b+1}
        v_sub_u32 v{b+5}, s69, v{b+4}
        v_sub_u32 v{b+6}, s70, v{b+4}
        v_cmp_gt_u32 vcc, s{sS}, v{b}
        v_med3_i32 v{b+5}, v{b+5}, 0, 4
        v_med3_i32 v{b+6}, v{b+6}, 0, 4
        s_andn2_b64 s[92:93], {valid}, {isA}
        s_or_b64 s[92:93], s[92:93], vcc
        v_cndmask_b32 v{b+5}, 0, v{b+5}, {isA}
        v_cndmask_b32 v{b+6}, 0, v{b+6}, s[92:93]
        v_lshlrev_b32 v{b+4}, 4, v{b+5}
        v_lshlrev_b32 v{b+7}, 4, v{b+6}
        v_mov_b32 v{vX}, -1
        v_mov_b32 v{vX+1}, -1
        v_lshlrev_b64 v[{vX+3}:{vX+4}], v{b+4}, v[{vX+1}:{vX+2}]
        """)
        a.lines.pop(); a.hist.pop(); a.lines.pop(); a.hist.pop(); a.lines.pop(); a.hist.pop()
        for (src, pat, first) in ((b+5, 0x33333333, True), (b+6, 0xcccccccc, False)):
            a(f"""
            v_cmp_lt_u32 s[94:95], 0, v{src}
            v_cmp_lt_u32 s[96:97], 1, v{src}
            v_cmp_lt_u32 s[98:99], 2, v{src}
            v_cmp_lt_u32 vcc, 3, v{src}
            v_mov_b32 v{vX}, {pat & 0xffff}
            v_mov_b32 v{vX+1}, {pat}
            v_cndmask_b32 v{vX+2}, 0, v{vX}, s[94:95]
            v_cndmask_b32 v{vX+2}, v{vX+2}, v{vX+1}, s[96:97]
            v_cndmask_b32 v{vX+3}, 0, v{vX}, s[98:99]
            v_cndmask_b32 v{vX+3}, v{vX+3}, v{vX+1}, vcc
            """)
            if first:
                a(f"v_mov_b32 v{d+1}, v{vX+2}\nv_mov_b32 v{d+2}, v{vX+3}")
            else:
                a(f"v_or_b32 v{d+1}, v{d+1}, v{vX+2}\nv_or_b32 v{d+2}, v{d+2}, v{vX+3}")
        a(f"""
        s_waitcnt lgkmcnt({1-r})
        v_lshlrev_b32 v{b+3}, 16, v{b+3}
        v_add_u32 v{b+3}, s46, v{b+3}
        v_cmp_ne_u32 vcc, 0, v{d+1}
        v_mov_b32 v{vX}, {OOB}
        v_cndmask_b32 v{d}, v{vX}, v{b+3}, vcc
        """)
    a(f"""
    s_sub_u32 s3, s{sN}, s{sSl}
    s_add_u32 s3, s3, 31
    s_ashr_i32 s3, s3, 5
    s_max_i32 s3, s3, 1
    s_add_u32 s3, s3, 3
    s_lshr_b32 s{sIt}, s3, 2
    s_mov_b32 s{sIdx}, 0
    """)
    def fetch_desc():
        for e in range(4):
            if e: a(f"s_add_u32 s{sIdx}, s{sIdx}, 1")
            a(f"v_readlane_b32 s{sOff+e}, v{vD0}, s{sIdx}")
            a(f"v_readlane_b32 s{sMask+2*e}, v{vD0+1}, s{sIdx}")
            a(f"v_readlane_b32 s{sMask+2*e+1}, v{vD0+2}, s{sIdx}")
        a(f"s_add_u32 s{sIdx}, s{sIdx}, 1")
    fetch_desc()
    if stamps: a("s_memrealtime s[92:93]")
    a(f"s_cmp_eq_u32 s47, 1\ns_nop 4\ns_cbranch_scc1 L_x{R}")
    hist_jump = list(a.hist)
    def QK(e):
        d = vS + 4*e
        a(f"v_mfma_f32_16x16x32_bf16 v[{d}:{d+3}], v[{kslot(e,0)}:{kslot(e,0)+3}], v[{vQ}:{vQ+3}], 0")
        a(f"v_mfma_f32_16x16x32_bf16 v[{d}:{d+3}], v[{kslot(e,1)}:{kslot(e,1)+3}], v[{vQ+4}:{vQ+7}], v[{d}:{d+3}]")
    def RED1(e):
        d = vS + 4*e
        a(f"""
        v_cndmask_b32 v{d}, v{d}, v{d+1}, s[{sModd}:{sModd+1}]
        v_cndmask_b32 v{d+2}, v{d+2}, v{d+3}, s[{sModd}:{sModd+1}]
        v_cndmask_b32 v{d}, v{d}, v{d+2}, s[{sMhi}:{sMhi+1}]
        """)
    def RED2(e):
        d = vS + 4*e
        a(f"v_add_f32_dpp v{d+1}, v{d}, v{d} row_ror:4 row_mask:0xf bank_mask:0xf")
    def RED3(e):
        d = vS + 4*e
        a(f"v_add_f32_dpp v{d}, v{d+1}, v{d+1} row_ror:8 row_mask:0xf bank_mask:0xf")
        a(f"v_cndmask_b32 v{d}, v{vNeg}, v{d}, s[{sMask+2*e}:{sMask+2*e+1}]")
    def SM():
        T = [vS + 4*e for e in range(4)]
        a(f"""
        v_max3_f32 v{vM}, v{vM}, v{T[0]}, v{T[1]}
        v_max3_f32 v{vM}, v{vM}, v{T[2]}, v{T[3]}
        v_mul_f32 v{vX}, s{sC}, v{vM}
        v_sub_f32 v{vAl}, v{vMC}, v{vX}
        v_fma_f32 v{T[0]}, v{T[0]}, s{sC}, -v{vX}
        v_fma_f32 v{T[1]}, v{T[1]}, s{sC}, -v{vX}
        v_fma_f32 v{T[2]}, v{T[2]}, s{sC}, -v{vX}
        v_fma_f32 v{T[3]}, v{T[3]}, s{sC}, -v{vX}
        v_exp_f32 v{vAl}, v{vAl}
        v_exp_f32 v{T[0]}, v{T[0]}
        v_exp_f32 v{T[1]}, v{T[1]}
        v_exp_f32 v{T[2]}, v{T[2]}
        v_exp_f32 v{T[3]}, v{T[3]}
        v_mov_b32 v{vMC}, v{vX}
        v_mov_b32_dpp v{vAq}, v{vAl} quad_perm:[0,0,0,0] row_mask:0xf bank_mask:0xf
        v_mov_b32_dpp v{vAq+1}, v{vAl} quad_perm:[1,1,1,1] row_mask:0xf bank_mask:0xf
        v_mov_b32_dpp v{vAq+2}, v{vAl} quad_perm:[2,2,2,2] row_mask:0xf bank_mask:0xf
        v_mov_b32_dpp v{vAq+3}, v{vAl} quad_perm:[3,3,3,3] row_mask:0xf bank_mask:0xf
        v_add_f32 v{vX}, v{T[0]}, v{T[1]}
        v_add_f32 v{vX+1}, v{T[2]}, v{T[3]}
        v_cvt_pk_bf16_f32 v{vP}, v{T[0]}, v{T[1]}
        v_cvt_pk_bf16_f32 v{vP+1}, v{T[2]}, v{T[3]}
        v_add_f32 v{vX}, v{vX}, v{vX+1}
        v_fma_f32 v{vL}, v{vL}, v{vAl}, v{vX}
        """)
    def RS(t0, t1):
        for t in range(t0, t1):
            r = vA + 4*t
            a(f"v_pk_mul_f32 v[{r}:{r+1}], v[{r}:{r+1}], v[{vAq}:{vAq+1}]")
            a(f"v_pk_mul_f32 v[{r+2}:{r+3}], v[{r+2}:{r+3}], v[{vAq+2}:{vAq+3}]")
    def PV(h, d0, d1):
        def perm(dd):
            t = vT + 2*(dd & 3); rr = dd >> 1; sel = sSelHi if dd & 1 else sSelLo
            a(f"v_perm_b32 v{t}, v{vslot(h,1)+rr}, v{vslot(h,0)+rr}, s{sel}")
            a(f"v_perm_b32 v{t+1}, v{vslot(h,3)+rr}, v{vslot(h,2)+rr}, s{sel}")
        def mm(dd):
            t = vT + 2*(dd & 3); r = vA + 4*(8*h + dd)
            a(f"v_mfma_f32_4x4x4_16b_bf16 v[{r}:{r+3}], v[{vP}:{vP+1}], v[{t}:{t+1}], v[{r}:{r+3}]")
        perm(d0)
        for dd in range(d0, d1):
            if dd + 1 < d1: perm(dd + 1)
            mm(dd)
    sched = {x: [] for x in range(16)}
    for e in range(4):
        sched[2*e + 1 + R].append(lambda e=e: QK(e))
    for e in range(3):
        sched[2*e + 2 + R].append(lambda e=e: (RED1(e), RED2(e), RED3(e)))
    xs = 8 + R
    assert xs <= 15
    sched[xs].append(lambda: (RED1(3), RED2(3), RED3(3), SM()))
    if xs + 2 <= 15:
        sched[xs+1].append(lambda: RS(0, 8)); sched[xs+2].append(lambda: RS(8, 16))
    elif xs + 1 <= 15:
        sched[xs+1].append(lambda: RS(0, 16))
    else:
        sched[xs].append(lambda: RS(0, 16))
    p0 = (11 + R) - 16; p1 = (15 + R) - 16
    assert p0 >= 0 and p1 + 1 < 8
    sched[p0].insert(0, lambda: PV(0, 0, 4)); sched[p0+1].insert(0, lambda: PV(0, 4, 8))
    sched[p1].insert(0, lambda: PV(1, 0, 4)); sched[p1+1].insert(0, lambda: PV(1, 4, 8))
    a.raw(".p2align 6")
    a("L_loop:")
    for x in range(16):
        a(f"L_x{x}:")
        a(f"s_waitcnt vmcnt({R-1})")
        load(x)
        for t in sched[x]: t()
    a(f"""
    s_cmp_lg_u32 s{sIdx}, 64
    s_cbranch_scc1 L_noswap
    v_mov_b32 v{vD0}, v{vD0+3}
    v_mov_b32 v{vD0+1}, v{vD0+4}
    v_mov_b32 v{vD0+2}, v{vD0+5}
    s_mov_b32 s{sIdx}, 0
    L_noswap:
    """)
    fetch_desc()
    a(f"s_sub_u32 s{sIt}, s{sIt}, 1\ns_cmp_lg_u32 s{sIt}, 0\ns_cbranch_scc1 L_loop")
    a.check_backedge("L_loop")
    a.check_jump(f"L_x{R}", hist_jump)
    a("s_waitcnt vmcnt(4)")
    PV(0, 0, 8)
    a("s_waitcnt vmcnt(0)")
    PV(1, 0, 8)
    if stamps: a("s_memrealtime s[94:95]")
    x0, x1 = vX, vX+1
    a(f"""
    v_mov_b32 v{x0}, v{vMC}
    v_mov_b32 v{x1}, v{vMC}
    v_permlane32_swap_b32 v{x0}, v{x1}
    v_max_f32 v{x0}, v{x0}, v{x1}
    v_mov_b32 v{x1}, v{x0}
    v_permlane16_swap_b32 v{x0}, v{x1}
    v_max_f32 v{vM}, v{x0}, v{x1}
    v_sub_f32 v{vAl}, v{vMC}, v{vM}
    v_exp_f32 v{vAl}, v{vAl}
    v_mul_f32 v{x0}, v{vL}, v{vAl}
    v_mov_b32_dpp v{vAq}, v{vAl} quad_perm:[0,0,0,0] row_mask:0xf bank_mask:0xf
    v_mov_b32_dpp v{vAq+1}, v{vAl} quad_perm:[1,1,1,1] row_mask:0xf bank_mask:0xf
    v_mov_b32_dpp v{vAq+2}, v{vAl} quad_perm:[2,2,2,2] row_mask:0xf bank_mask:0xf
    v_mov_b32_dpp v{vAq+3}, v{vAl} quad_perm:[3,3,3,3] row_mask:0xf bank_mask:0xf
    v_mov_b32 v{x1}, v{x0}
    v_permlane32_swap_b32 v{x0}, v{x1}
    v_add_f32 v{x0}, v{x0}, v{x1}
    v_mov_b32 v{x1}, v{x0}
    v_permlane16_swap_b32 v{x0}, v{x1}
    v_add_f32 v{vL}, v{x0}, v{x1}
    """)
    RS(0, 16)
    for t in range(8):
        for q in range(4):
            a(f"v_permlane32_swap_b32 v{vA+4*t+q}, v{vA+4*(t+8)+q}")
    for t in range(8):
        for q in range(4):
            a(f"v_add_f32 v{vA+4*t+q}, v{vA+4*t+q}, v{vA+4*(t+8)+q}")
    for t in range(4):
        for q in range(4):
            a(f"v_permlane16_swap_b32 v{vA+4*t+q}, v{vA+4*(t+4)+q}")
    vW = vK
    for q in range(4):
        for t in range(4):
            a(f"v_add_f32 v{vW+4*q+t}, v{vA+4*t+q}, v{vA+4*(t+4)+q}")
    a(f"""
    v_lshrrev_b32 v{x0}, 5, v1
    v_lshlrev_b32 v{x0}, 9, v{x0}
    v_and_b32 v{x1}, 15, v1
    v_lshl_add_u32 v{x0}, v{x1}, 5, v{x0}
    v_bfe_u32 v{x1}, v1, 4, 1
    v_lshl_add_u32 v{x0}, v{x1}, 4, v{x0}
    s_lshl_b32 s3, s{sJ}, 12
    v_add_u32 v{x0}, s3, v{x0}
    """)
    for q in range(4):
        a(f"ds_write_b128 v{x0}, v[{vW+4*q}:{vW+4*q+3}] offset:{20480 + q*1024}")
    a(f"""
    v_lshlrev_b32 v{x1}, 4, v1
    s_lshl_b32 s3, s{sJ}, 2
    v_add_u32 v{vX+2}, s3, v{x1}
    s_mov_b64 exec, 0xf
    ds_write_b32 v{vX+2}, v{vM} offset:16448
    ds_write_b32 v{vX+2}, v{vL} offset:16512
    s_mov_b64 exec, -1
    s_lshl_b32 s3, s{sJ}, 4
    v_mov_b32 v{vX+2}, s3
    s_lshl_b32 s3, s{sJ}, 10
    v_add_u32 v{vX+3}, s3, v{x1}
    s_waitcnt lgkmcnt(0)
    s_barrier
    ds_read_b128 v[{vS}:{vS+3}], v{vX+2} offset:16448
    ds_read_b128 v[{vS+4}:{vS+7}], v{vX+2} offset:16512
    """)
    for w in range(4):
        a(f"ds_read_b128 v[{vV+4*w}:{vV+4*w+3}], v{vX+3} offset:{20480 + w*4096}")
    a(f"""
    s_lshl_b32 s3, s{sHead}, 2
    s_add_u32 s3, s3, s{sJ}
    s_lshl_b32 s3, s3, 5
    s_add_u32 s3, s3, s{sSl}
    s_lshl_b32 s39, s3, 10
    v_add_u32 v{x1}, s39, v{x1}
    s_lshl_b32 s39, s3, 3
    s_add_u32 s39, s39, 0x100000
    v_mov_b32 v{x0}, s39
    s_waitcnt lgkmcnt(4)
    v_max_f32 v{vM}, v{vS}, v{vS+1}
    v_max3_f32 v{vM}, v{vM}, v{vS+2}, v{vS+3}
    """)
    for w in range(4): a(f"v_sub_f32 v{vS+w}, v{vS+w}, v{vM}")
    for w in range(4): a(f"v_exp_f32 v{vS+w}, v{vS+w}")
    a(f"v_mul_f32 v{vM+1}, v{vS}, v{vS+4}")
    for w in range(1, 4): a(f"v_fmac_f32 v{vM+1}, v{vS+w}, v{vS+4+w}")
    a("s_waitcnt lgkmcnt(0)")
    for t in range(4): a(f"v_mul_f32 v{vW+t}, v{vS}, v{vV+t}")
    for w in range(1, 4):
        for t in range(4): a(f"v_fmac_f32 v{vW+t}, v{vS+w}, v{vV+4*w+t}")
    a(f"""
    global_store_dwordx4 v{x1}, v[{vW}:{vW+3}], s[18:19]
    s_mov_b64 exec, 1
    global_store_dwordx2 v{x0}, v[{vM}:{vM+1}], s[18:19]
    """)
    if stamps:
        a(f"""
        s_waitcnt vmcnt(0)
        s_memrealtime s[96:97]
        s_getreg_b32 s98, hwreg(HW_REG_XCC_ID)
        s_getreg_b32 s99, hwreg(HW_REG_HW_ID)
        s_lshl_b32 s3, s2, 2
        s_add_u32 s3, s3, s{sJ}
        s_lshl_b32 s3, s3, 6
        s_add_u32 s3, s3, 0x20000000
        v_mov_b32 v{x0}, s3
        s_waitcnt lgkmcnt(0)
        """)
        for i in range(12): a(f"v_mov_b32 v{vV+i}, s{88+i}")
        a(f"""
        global_store_dwordx4 v{x0}, v[{vV}:{vV+3}], s[18:19]
        global_store_dwordx4 v{x0}, v[{vV+4}:{vV+7}], s[18:19] offset:16
        global_store_dwordx4 v{x0}, v[{vV+8}:{vV+11}], s[18:19] offset:32
        """)
    a("L_end:\ns_endpgm")
    a.raw(".globl combine_kernel\n.p2align 8\n.type combine_kernel,@function\ncombine_kernel:")
    a.hist = []
    a(f"""
    {"s_memrealtime s[50:51]" if stamps else ""}
    s_load_dwordx2 s[4:5], s[0:1], 40
    s_load_dwordx2 s[6:7], s[0:1], 56
    s_cmp_ge_u32 s2, 32
    s_cbranch_scc1 L_end2
    s_lshl_b32 s3, s2, 15
    v_lshlrev_b32 v1, 4, v0
    v_add_u32 v1, s3, v1
    v_and_b32 v2, 31, v0
    v_lshlrev_b32 v2, 3, v2
    s_lshl_b32 s3, s2, 8
    s_add_u32 s3, s3, 0x100000
    v_add_u32 v2, s3, v2
    s_waitcnt lgkmcnt(0)
    global_load_dwordx2 v[4:5], v2, s[6:7]
    """)
    for s in range(32):
        if s % 4 == 0 and s: a("v_add_u32 v1, 0x1000, v1")
        a(f"global_load_dwordx4 v[{8+4*s}:{11+4*s}], v1, s[6:7] offset:{(s%4)*1024}")
    a(f"""
    s_lshr_b32 s8, s2, 2
    s_lshl_b32 s8, s8, 10
    s_and_b32 s9, s2, 1
    s_lshl_b32 s9, s9, 9
    s_add_u32 s8, s8, s9
    s_bfe_u32 s9, s2, 0x10001
    s_lshl_b32 s9, s9, 13
    s_add_u32 s8, s8, s9
    v_lshlrev_b32 v3, 3, v0
    v_add_u32 v3, s8, v3
    s_waitcnt vmcnt(32)
    v_mov_b32 v6, v4
    """)
    for k in (1, 2, 4, 8):
        a(f"v_max_f32_dpp v6, v6, v6 row_ror:{k} row_mask:0xf bank_mask:0xf")
    a("""
    v_mov_b32 v7, v6
    v_permlane16_swap_b32 v6, v7
    v_max_f32 v6, v6, v7
    v_sub_f32 v4, v4, v6
    v_exp_f32 v4, v4
    v_mul_f32 v5, v5, v4
    """)
    for k in (1, 2, 4, 8):
        a(f"v_add_f32_dpp v5, v5, v5 row_ror:{k} row_mask:0xf bank_mask:0xf")
    a("""
    v_mov_b32 v7, v5
    v_permlane16_swap_b32 v5, v7
    v_add_f32 v5, v5, v7
    v_rcp_f32 v5, v5
    v_mul_f32 v4, v4, v5
    """)
    for s in range(32): a(f"v_readlane_b32 s{16+s}, v4, {s}")
    for s in range(32):
        a(f"s_waitcnt vmcnt({31-s})")
        for t in range(4):
            if s == 0: a(f"v_mul_f32 v{140+t}, s16, v{8+t}")
            else: a(f"v_fmac_f32 v{140+t}, s{16+s}, v{8+4*s+t}")
    a("""
    v_cvt_pk_bf16_f32 v144, v140, v141
    v_cvt_pk_bf16_f32 v145, v142, v143
    global_store_dwordx2 v3, v[144:145], s[4:5]
    """)
    if stamps:
        a("""
        s_waitcnt vmcnt(0)
        s_memrealtime s[52:53]
        s_lshl_b32 s3, s2, 4
        s_add_u32 s3, s3, 0x21000000
        v_mov_b32 v1, s3
        s_waitcnt lgkmcnt(0)
        v_mov_b32 v4, s50
        v_mov_b32 v5, s51
        v_mov_b32 v6, s52
        v_mov_b32 v7, s53
        s_mov_b64 exec, 1
        global_store_dwordx4 v1, v[4:7], s[6:7]
        """)
    a("""
    L_end2:
    s_endpgm
    """)
    if diag:
        from diag import diag_kernel
        diag_kernel(a, 1024, **diag)
    def kd(name, nv, ns):
        a.raw(f""".amdhsa_kernel {name}
  .amdhsa_next_free_vgpr {nv}
  .amdhsa_next_free_sgpr {ns}
  .amdhsa_accum_offset {(nv+3)//4*4}
  .amdhsa_group_segment_fixed_size 0
  .amdhsa_kernarg_size 64
  .amdhsa_user_sgpr_count 2
  .amdhsa_user_sgpr_kernarg_segment_ptr 1
  .amdhsa_system_sgpr_workgroup_id_x 1
  .amdhsa_float_denorm_mode_32 3
.end_amdhsa_kernel""")
    a.raw('.section .rodata,"a"\n.p2align 6')
    kd(KNAME, 208, 102)
    a.raw(".p2align 6")
    kd("combine_kernel", 148, 56)
    if diag:
        a.raw(".p2align 6")
        kd("diag_kernel", 64, 32)
    return a.text()

if __name__ == "__main__":
    out = sys.argv[1]
    kw = eval("dict(" + (sys.argv[2] if len(sys.argv) > 2 else "") + ")")
    open(out, "w").write(gen(**kw))
```

```python
import sys, math, struct
from asmlib import Asm
KNAME = "standalone__paged_block_table_kv_radixattention__decode_kernel"
HDR = open("standalone__paged_block_table_kv_radixattention__decode.s.ref").read().split("; Override launch")[0]
C_SCALE = 0x3db8aa3b

vKo, vVo = 2, 3
vQ = 4
vD0 = 12
vM, vMC, vL, vAl = 18, 19, 20, 21
vAq = 22
vP = 26
vS = 28
vT = 44
vK = 52
vV = 84
vA = 116
vNeg = 180
vPo, vPm = 181, 182
vX = 184
vTb = 192
sJ, sHead, sSl = 36, 37, 38
sRank, sChk = 42, 43
sOff = 48
sMask = 56
sIdx, sIt = 72, 73
sModd, sMhi = 74, 76
sSelLo, sSelHi, sC = 78, 79, 80
sN, sS, sNb0, sNb1, sC0, sC1 = 81, 82, 83, 84, 85, 86
sST = 28
OOB = 0xF0000000
ML_OFF = 0x10000
FL_OFF = 0
DA_OFF = 0x40000
sSt, sNonce = 87, 71
vFl, vNo = 183, 208
LDS_S, LDS_M, LDS_L, LDS_RK, LDS_O = 16384, 16448, 16512, 16576, 20480

def kslot(e, h): return vK + (2*e + h)*4
def vslot(h, e): return vV + (4*h + e)*4

def gen(R=5, pol="nt", stamps=False, lds=98304, diag=None, P0=8, B=1, C=8, psleep=0, noclear=False, nononce=False, clearpol='sc1', nocas=False, noeload=False, nvg=212):
    a = Asm()
    STR = [28, 30, 32, 34, 88, 90, 100]
    def stamp(i):
        if stamps: a(f"s_memrealtime s[{STR[i]}:{STR[i]+1}]")
    a.raw(HDR.rstrip("\n"))
    if diag:
        a.raw(f"; @launch kernel={KNAME} grid=(256,1,1) block=(256,1,1) lds={lds}")
        a.raw("; @launch kernel=diag_kernel grid=(1,1,1) block=(64,1,1) lds=0")
    else:
        a.raw(f"; @launch grid=(256,1,1) block=(256,1,1) lds={lds}")
    a.raw('.amdgcn_target "amdgcn-amd-amdhsa--gfx950"\n.text')
    a.raw(f".globl {KNAME}\n.p2align 8\n.type {KNAME},@function\n{KNAME}:")
    stamp(0)
    a(f"""
    s_load_dwordx16 s[4:19], s[0:1], 0
    s_cmp_ge_u32 s2, 256
    s_cbranch_scc1 L_end
    v_lshrrev_b32 v{vX}, 6, v0
    v_and_b32 v1, 63, v0
    s_lshr_b32 s{sHead}, s2, 3
    v_readfirstlane_b32 s{sJ}, v{vX}
    s_and_b32 s{sHead}, s{sHead}, 7
    s_and_b32 s{sSl}, s2, 7
    s_lshr_b32 s3, s2, 6
    s_lshl_b32 s3, s3, 3
    s_add_u32 s{sSl}, s{sSl}, s3
    s_lshl_b32 s39, s{sHead}, 9
    v_lshrrev_b32 v{vX}, 4, v1
    v_bfe_u32 v{vX+1}, v1, 2, 2
    v_and_b32 v{vX+2}, 3, v1
    v_lshlrev_b32 v{vX+3}, 6, v{vX}
    v_lshl_add_u32 v{vKo}, v{vX+1}, 12, v{vX+3}
    v_lshl_add_u32 v{vKo}, v{vX+2}, 4, v{vKo}
    v_add_u32 v{vKo}, s39, v{vKo}
    v_and_b32 v{vX+4}, 15, v1
    v_lshlrev_b32 v{vVo}, 12, v{vX}
    v_lshl_add_u32 v{vVo}, v{vX+4}, 4, v{vVo}
    v_add_u32 v{vVo}, s39, v{vVo}
    v_lshl_add_u32 v{vX+5}, v{vX+1}, 4, v{vX+3}
    v_lshrrev_b32 v{vX+6}, 1, v{vX+2}
    v_lshl_add_u32 v{vX+5}, v{vX+6}, 13, v{vX+5}
    v_and_b32 v{vX+6}, 1, v1
    v_lshl_add_u32 v{vX+5}, v{vX+6}, 9, v{vX+5}
    s_lshl_b32 s39, s39, 1
    v_add_u32 v{vX+5}, s39, v{vX+5}
    v_lshlrev_b32 v{vX+6}, 5, v0
    v_add_u32 v{vX+7}, 0x2000, v{vX+6}
    s_lshl_b32 s3, s{sSl}, 2
    s_waitcnt lgkmcnt(0)
    s_load_dwordx2 s[40:41], s[12:13], 0
    s_add_u32 s44, s10, s3
    s_addc_u32 s45, s11, 0
    s_load_dword s{sOff}, s[44:45], 0
    s_load_dword s{sOff+1}, s[44:45], 128
    s_load_dword s{sOff+2}, s[44:45], 256
    s_load_dword s{sOff+3}, s[44:45], 384
    {'' if noeload else 's_load_dword s53, s[18:19], 0'}
    global_load_dwordx4 v[{vTb}:{vTb+3}], v{vX+6}, s[10:11]
    global_load_dwordx4 v[{vTb+4}:{vTb+7}], v{vX+6}, s[10:11] offset:16
    global_load_dwordx4 v[{vTb+8}:{vTb+11}], v{vX+7}, s[10:11]
    global_load_dwordx4 v[{vTb+12}:{vTb+15}], v{vX+7}, s[10:11] offset:16
    global_load_dwordx4 v[{vQ}:{vQ+3}], v{vX+5}, s[4:5]
    global_load_dwordx4 v[{vQ+4}:{vQ+7}], v{vX+5}, s[4:5] offset:256
    s_lshl_b32 s3, s{sHead}, 2
    s_add_u32 s3, s3, s{sJ}
    s_lshl_b32 s3, s3, 5
    s_add_u32 s3, s3, s{sSl}
    s_lshl_b32 s39, s3, 10
    s_add_u32 s39, s39, {DA_OFF}
    v_lshlrev_b32 v{vPo}, 4, v1
    v_add_u32 v{vPo}, s39, v{vPo}
    s_lshl_b32 s39, s3, 7
    s_add_u32 s39, s39, {ML_OFF}
    v_lshlrev_b32 v{vPm}, 4, v1
    v_add_u32 v{vPm}, s39, v{vPm}
    s_cmp_lg_u32 s{sJ}, {99 if noclear else 0}
    s_cbranch_scc1 L_noclear
    v_mov_b64 v[{vS}:{vS+1}], -1
    v_mov_b64 v[{vS+2}:{vS+3}], -1
    v_add_u32 v{vS+4}, 0x8000, v{vPo}
    v_add_u32 v{vS+5}, 0x10000, v{vPo}
    v_add_u32 v{vS+6}, 0x18000, v{vPo}
    v_lshrrev_b32 v{vS+7}, 3, v1
    v_mul_u32_u24 v{vS+7}, {4096-128}, v{vS+7}
    v_add_u32 v{vS+7}, v{vS+7}, v{vPm}
    global_store_dwordx4 v{vPo}, v[{vS}:{vS+3}], s[18:19] {clearpol}
    global_store_dwordx4 v{vS+4}, v[{vS}:{vS+3}], s[18:19] {clearpol}
    global_store_dwordx4 v{vS+5}, v[{vS}:{vS+3}], s[18:19] {clearpol}
    global_store_dwordx4 v{vS+6}, v[{vS}:{vS+3}], s[18:19] {clearpol}
    s_mov_b32 exec_hi, 0
    global_store_dwordx4 v{vS+7}, v[{vS}:{vS+3}], s[18:19] {clearpol}
    s_mov_b64 exec, -1
    L_noclear:
    s_mov_b32 s20, s6
    s_and_b32 s21, s7, 0xffff
    s_mov_b32 s22, 201326592
    s_mov_b32 s23, 0x20000
    s_mov_b32 s24, s8
    s_and_b32 s25, s9, 0xffff
    s_mov_b32 s26, 201326592
    s_mov_b32 s27, 0x20000
    s_lshl_b32 s46, s{sJ}, 14
    s_waitcnt lgkmcnt(0)
    """)
    for e in range(4):
        a(f"s_lshl_b32 s{sOff+e}, s{sOff+e}, 16\ns_add_u32 s{sOff+e}, s{sOff+e}, s46")
    def load(x):
        if x < 8:
            e, h = x >> 1, x & 1
            r = kslot(e, h)
            a(f"buffer_load_dwordx4 v[{r}:{r+3}], v{vKo}, s[20:23], s{sOff+e} offen offset:{h*256} {pol}")
        else:
            h, e = (x - 8) >> 2, (x - 8) & 3
            r = vslot(h, e)
            a(f"buffer_load_dwordx4 v[{r}:{r+3}], v{vVo}, s[24:27], s{sOff+e} offen offset:{h*256} {pol}")
    a(f"""
    s_cmp_le_i32 s40, 0
    s_cselect_b32 s{sC0}, 0x8000, s40
    s_lshl_b32 s3, s{sSl}, 4
    s_add_u32 s3, s3, {96*16}
    s_cmp_lt_u32 s3, s{sC0}
    s_cselect_b32 s47, 1, 0
    s_cbranch_scc0 L_noearly
    """)
    for x in range(P0): load(x)
    a("s_branch L_early_done\nL_noearly:")
    for i in range(0, 32, 2): a(f"v_mov_b64 v[{vV+i}:{vV+i+1}], 0")
    a("s_waitcnt vmcnt(0)\nL_early_done:")
    a(f"""
    s_add_u32 s52, s53, 1
    s_max_u32 s52, s52, 1
    s_mov_b32 s54, s52
    s_mov_b32 s53, 0
    s_lshl_b32 s3, s2, 2
    s_add_u32 s3, s3, s{sJ}
    s_cmp_lg_u32 s3, {9999 if nocas else 0}
    s_cbranch_scc1 L_nocas
    s_atomic_cmpswap s[52:53], s[16:17], 0x0
    L_nocas:
    """)
    a(f"""
    s_mov_b32 s64, 0x33333333
    s_mov_b32 s65, 0x33333333
    s_mov_b32 s66, 0xcccccccc
    s_mov_b32 s67, 0xcccccccc
    s_cmp_le_i32 s40, 0
    s_cselect_b64 s[64:65], 0, s[64:65]
    s_cmp_le_i32 s41, 0
    s_cselect_b32 s{sC1}, 0x8000, s41
    s_cselect_b64 s[66:67], 0, s[66:67]
    s_or_b64 s[64:65], s[64:65], s[66:67]
    s_min_u32 s{sC0}, s{sC0}, 0x8000
    s_min_u32 s{sC1}, s{sC1}, 0x8000
    s_add_u32 s{sNb0}, s{sC0}, 15
    s_lshr_b32 s{sNb0}, s{sNb0}, 4
    s_add_u32 s{sNb1}, s{sC1}, 15
    s_lshr_b32 s{sNb1}, s{sNb1}, 4
    """)
    for i in range(0, 64, 2): a(f"v_mov_b64 v[{vA+i}:{vA+i+1}], 0")
    a(f"""
    v_mov_b64 v[{vP}:{vP+1}], 0
    v_and_b32 v{vFl}, 31, v1
    s_lshl_b32 s3, s{sHead}, 5
    v_add_u32 v{vFl}, s3, v{vFl}
    v_lshlrev_b32 v{vFl}, 7, v{vFl}
    v_mov_b32 v{vL}, 0
    v_mov_b32 v{vM}, 0xf149f2ca
    v_mov_b32 v{vNeg}, 0xff800000
    s_mov_b32 s{sC}, {C_SCALE}
    v_mul_f32 v{vMC}, s{sC}, v{vM}
    s_mov_b32 s{sModd}, 0xf0f0f0f0
    s_mov_b32 s{sModd+1}, 0xf0f0f0f0
    s_mov_b32 s{sMhi}, 0xff00ff00
    s_mov_b32 s{sMhi+1}, 0xff00ff00
    s_mov_b32 s{sSelLo}, 0x05040100
    s_mov_b32 s{sSelHi}, 0x07060302
    s_cmp_lg_u32 s{sJ}, {99 if noclear else 0}
    s_cbranch_scc1 L_w1
    s_waitcnt vmcnt({P0+5})
    s_branch L_w2
    L_w1:
    s_waitcnt vmcnt({P0})
    L_w2:
    """)
    stamp(1)
    a(f"""
    ds_write_b128 v{vX+6}, v[{vTb}:{vTb+3}]
    ds_write_b128 v{vX+6}, v[{vTb+4}:{vTb+7}] offset:16
    ds_write_b128 v{vX+7}, v[{vTb+8}:{vTb+11}]
    ds_write_b128 v{vX+7}, v[{vTb+12}:{vTb+15}] offset:16
    """)
    mk = [56, 58, 60, 62, 92, 94, 96, 98]
    for k in range(8):
        a(f"v_cmp_eq_u32 s[{mk[k]}:{mk[k]+1}], v{vTb+k}, v{vTb+8+k}")
    for k in range(1, 8):
        a(f"s_and_b64 s[{mk[k]}:{mk[k]+1}], s[{mk[k]}:{mk[k]+1}], s[{mk[k-1]}:{mk[k-1]+1}]")
    a(f"s_ff0_i32_b64 s3, s[{mk[7]}:{mk[7]+1}]")
    a(f"s_lshl_b32 s39, s{sJ}, 6\ns_add_u32 s39, s39, s3\ns_lshl_b32 s39, s39, 3")
    for k in range(7):
        a(f"s_bitcmp1_b64 s[{mk[k]}:{mk[k]+1}], s3\ns_addc_u32 s39, s39, 0")
    a(f"""
    s_cmp_lt_i32 s3, 0
    s_cselect_b32 s39, 2048, s39
    s_lshl_b32 s3, s{sJ}, 2
    v_mov_b32 v{vX}, s3
    v_mov_b32 v{vX+1}, s39
    ds_write_b32 v{vX}, v{vX+1} offset:{LDS_S}
    """)
    for i in range(8): a(f"v_cndmask_b32 v{vQ+i}, 0, v{vQ+i}, s[64:65]")
    a(f"""
    v_mov_b32 v{vX}, 0
    s_cmp_eq_u32 s{sJ}, 0
    s_cselect_b32 s{sSt}, {0 if nononce else 2}, 0
    s_waitcnt lgkmcnt(0)
    s_barrier
    ds_read_b128 v[{vTb}:{vTb+3}], v{vX} offset:{LDS_S}
    s_waitcnt lgkmcnt(0)
    v_min_u32 v{vTb}, v{vTb}, v{vTb+1}
    v_min3_u32 v{vTb}, v{vTb}, v{vTb+2}, v{vTb+3}
    s_min_u32 s3, s{sNb0}, s{sNb1}
    v_readfirstlane_b32 s{sS}, v{vTb}
    s_min_u32 s{sS}, s{sS}, s3
    s_add_u32 s{sN}, s{sNb0}, s{sNb1}
    s_sub_u32 s{sN}, s{sN}, s{sS}
    s_sub_u32 s39, s{sS}, s{sNb0}
    s_lshl_b32 s68, s{sJ}, 2
    s_sub_u32 s69, s{sC0}, s68
    s_sub_u32 s70, s{sC1}, s68
    """)
    for r in range(2):
        b = vTb + r*8
        a(f"""
        v_lshlrev_b32 v{b}, 5, v1
        s_add_u32 s3, s{sSl}, {r*2048}
        v_add_u32 v{b}, s3, v{b}
        v_cmp_gt_u32 s[{56+r*4}:{57+r*4}], s{sNb0}, v{b}
        v_add_u32 v{b+1}, s39, v{b}
        v_cmp_gt_u32 s[{58+r*4}:{59+r*4}], s{sN}, v{b}
        v_cndmask_b32 v{b+1}, v{b+1}, v{b}, s[{56+r*4}:{57+r*4}]
        v_min_u32 v{b+2}, 2047, v{b+1}
        v_lshlrev_b32 v{b+2}, 2, v{b+2}
        v_add_u32 v{b+4}, 0x2000, v{b+2}
        v_cndmask_b32 v{b+2}, v{b+4}, v{b+2}, s[{56+r*4}:{57+r*4}]
        ds_read_b32 v{b+3}, v{b+2}
        """)
    a(f"""
    v_mov_b32 v{vX+4}, 0x3333
    v_mov_b32 v{vX+5}, 0x33333333
    v_mov_b32 v{vX+6}, 0xcccc
    v_mov_b32 v{vX+7}, 0xcccccccc
    """)
    for r in range(2):
        b = vTb + r*8
        isA = f"s[{56+r*4}:{57+r*4}]"; valid = f"s[{58+r*4}:{59+r*4}]"
        d = vD0 + 3*r
        a(f"""
        v_lshlrev_b32 v{b+4}, 4, v{b+1}
        v_sub_u32 v{b+5}, s69, v{b+4}
        v_sub_u32 v{b+6}, s70, v{b+4}
        v_cmp_gt_u32 vcc, s{sS}, v{b}
        s_andn2_b64 s[92:93], {valid}, {isA}
        s_or_b64 s[92:93], s[92:93], vcc
        v_cndmask_b32 v{b+5}, 0, v{b+5}, {isA}
        v_cndmask_b32 v{b+6}, 0, v{b+6}, s[92:93]
        v_cmp_lt_i32 s[94:95], 0, v{b+5}
        v_cmp_lt_i32 s[96:97], 1, v{b+5}
        v_cmp_lt_i32 s[98:99], 2, v{b+5}
        v_cmp_lt_i32 vcc, 3, v{b+5}
        v_cndmask_b32 v{d+1}, 0, v{vX+4}, s[94:95]
        v_cndmask_b32 v{d+1}, v{d+1}, v{vX+5}, s[96:97]
        v_cndmask_b32 v{d+2}, 0, v{vX+4}, s[98:99]
        v_cndmask_b32 v{d+2}, v{d+2}, v{vX+5}, vcc
        v_cmp_lt_i32 s[94:95], 0, v{b+6}
        v_cmp_lt_i32 s[96:97], 1, v{b+6}
        v_cmp_lt_i32 s[98:99], 2, v{b+6}
        v_cmp_lt_i32 vcc, 3, v{b+6}
        v_cndmask_b32 v{vX+2}, 0, v{vX+6}, s[94:95]
        v_cndmask_b32 v{vX+2}, v{vX+2}, v{vX+7}, s[96:97]
        v_cndmask_b32 v{vX+3}, 0, v{vX+6}, s[98:99]
        v_cndmask_b32 v{vX+3}, v{vX+3}, v{vX+7}, vcc
        v_or_b32 v{d+1}, v{d+1}, v{vX+2}
        v_or_b32 v{d+2}, v{d+2}, v{vX+3}
        s_waitcnt lgkmcnt({1-r})
        v_lshlrev_b32 v{b+3}, 16, v{b+3}
        v_cmp_ne_u32 vcc, 0, v{d+1}
        v_add_u32 v{b+3}, s46, v{b+3}
        v_mov_b32 v{vX}, {OOB}
        v_cndmask_b32 v{d}, v{vX}, v{b+3}, vcc
        """)
    a(f"""
    s_sub_u32 s3, s{sN}, s{sSl}
    s_add_u32 s3, s3, 31
    s_ashr_i32 s3, s3, 5
    s_max_i32 s3, s3, 1
    s_add_u32 s3, s3, 3
    s_lshr_b32 s{sIt}, s3, 2
    s_mov_b32 s{sIdx}, 0
    """)
    def fetch_desc():
        for e in range(4):
            if e: a(f"s_add_u32 s{sIdx}, s{sIdx}, 1")
            a(f"v_readlane_b32 s{sOff+e}, v{vD0}, s{sIdx}")
            a(f"v_readlane_b32 s{sMask+2*e}, v{vD0+1}, s{sIdx}")
            a(f"v_readlane_b32 s{sMask+2*e+1}, v{vD0+2}, s{sIdx}")
        a(f"s_add_u32 s{sIdx}, s{sIdx}, 1")
    fetch_desc()
    stamp(2)
    a(f"s_cmp_eq_u32 s47, 1\ns_nop 4\ns_cbranch_scc0 L_burst")
    hist_jump = list(a.hist)
    for x in range(P0, 16): load(x)
    a("s_branch L_burst_qk")
    hist_jump2 = list(a.hist)
    def QK(e):
        d = vS + 4*e
        a(f"v_mfma_f32_16x16x32_bf16 v[{d}:{d+3}], v[{kslot(e,0)}:{kslot(e,0)+3}], v[{vQ}:{vQ+3}], 0")
        a(f"v_mfma_f32_16x16x32_bf16 v[{d}:{d+3}], v[{kslot(e,1)}:{kslot(e,1)+3}], v[{vQ+4}:{vQ+7}], v[{d}:{d+3}]")
    def RED(e):
        d = vS + 4*e
        a(f"""
        v_cndmask_b32 v{d}, v{d}, v{d+1}, s[{sModd}:{sModd+1}]
        v_cndmask_b32 v{d+2}, v{d+2}, v{d+3}, s[{sModd}:{sModd+1}]
        v_cndmask_b32 v{d}, v{d}, v{d+2}, s[{sMhi}:{sMhi+1}]
        v_add_f32_dpp v{d+1}, v{d}, v{d} row_ror:4 row_mask:0xf bank_mask:0xf
        v_add_f32_dpp v{d}, v{d+1}, v{d+1} row_ror:8 row_mask:0xf bank_mask:0xf
        v_cndmask_b32 v{d}, v{vNeg}, v{d}, s[{sMask+2*e}:{sMask+2*e+1}]
        """)
    def SM(wave_max):
        T = [vS + 4*e for e in range(4)]
        a(f"""
        v_max3_f32 v{vM}, v{vM}, v{T[0]}, v{T[1]}
        v_max3_f32 v{vM}, v{vM}, v{T[2]}, v{T[3]}
        """)
        if wave_max:
            a(f"""
            v_mov_b32 v{vX}, v{vM}
            v_permlane32_swap_b32 v{vM}, v{vX}
            v_max_f32 v{vM}, v{vM}, v{vX}
            v_mov_b32 v{vX}, v{vM}
            v_permlane16_swap_b32 v{vM}, v{vX}
            v_max_f32 v{vM}, v{vM}, v{vX}
            """)
        a(f"""
        v_mul_f32 v{vX}, s{sC}, v{vM}
        v_sub_f32 v{vAl}, v{vMC}, v{vX}
        v_fma_f32 v{T[0]}, v{T[0]}, s{sC}, -v{vX}
        v_fma_f32 v{T[1]}, v{T[1]}, s{sC}, -v{vX}
        v_fma_f32 v{T[2]}, v{T[2]}, s{sC}, -v{vX}
        v_fma_f32 v{T[3]}, v{T[3]}, s{sC}, -v{vX}
        v_exp_f32 v{vAl}, v{vAl}
        v_exp_f32 v{T[0]}, v{T[0]}
        v_exp_f32 v{T[1]}, v{T[1]}
        v_exp_f32 v{T[2]}, v{T[2]}
        v_exp_f32 v{T[3]}, v{T[3]}
        v_mov_b32 v{vMC}, v{vX}
        v_mov_b32_dpp v{vAq}, v{vAl} quad_perm:[0,0,0,0] row_mask:0xf bank_mask:0xf
        v_mov_b32_dpp v{vAq+1}, v{vAl} quad_perm:[1,1,1,1] row_mask:0xf bank_mask:0xf
        v_mov_b32_dpp v{vAq+2}, v{vAl} quad_perm:[2,2,2,2] row_mask:0xf bank_mask:0xf
        v_mov_b32_dpp v{vAq+3}, v{vAl} quad_perm:[3,3,3,3] row_mask:0xf bank_mask:0xf
        v_add_f32 v{vX}, v{T[0]}, v{T[1]}
        v_add_f32 v{vX+1}, v{T[2]}, v{T[3]}
        v_cvt_pk_bf16_f32 v{vP}, v{T[0]}, v{T[1]}
        v_cvt_pk_bf16_f32 v{vP+1}, v{T[2]}, v{T[3]}
        v_add_f32 v{vX}, v{vX}, v{vX+1}
        v_fma_f32 v{vL}, v{vL}, v{vAl}, v{vX}
        """)
    def RS(t0, t1):
        for t in range(t0, t1):
            r = vA + 4*t
            a(f"v_pk_mul_f32 v[{r}:{r+1}], v[{r}:{r+1}], v[{vAq}:{vAq+1}]")
            a(f"v_pk_mul_f32 v[{r+2}:{r+3}], v[{r+2}:{r+3}], v[{vAq+2}:{vAq+3}]")
    def PV(h, d0, d1):
        def perm(dd):
            t = vT + 2*(dd & 3); rr = dd >> 1; sel = sSelHi if dd & 1 else sSelLo
            a(f"v_perm_b32 v{t}, v{vslot(h,1)+rr}, v{vslot(h,0)+rr}, s{sel}")
            a(f"v_perm_b32 v{t+1}, v{vslot(h,3)+rr}, v{vslot(h,2)+rr}, s{sel}")
        def mm(dd):
            t = vT + 2*(dd & 3); r = vA + 4*(8*h + dd)
            a(f"v_mfma_f32_4x4x4_16b_bf16 v[{r}:{r+3}], v[{vP}:{vP+1}], v[{t}:{t+1}], v[{r}:{r+3}]")
        perm(d0)
        for dd in range(d0, d1):
            if dd + 1 < d1: perm(dd + 1)
            mm(dd)
    sched = {x: [] for x in range(16)}
    for e in range(4):
        sched[2*e + 1 + R].append(lambda e=e: QK(e))
    for e in range(3):
        sched[2*e + 2 + R].append(lambda e=e: RED(e))
    xs = 8 + R
    assert xs <= 15
    sched[xs].append(lambda: (RED(3), SM(False)))
    if xs + 2 <= 15:
        sched[xs+1].append(lambda: RS(0, 8)); sched[xs+2].append(lambda: RS(8, 16))
    elif xs + 1 <= 15:
        sched[xs+1].append(lambda: RS(0, 16))
    else:
        sched[xs].append(lambda: RS(0, 16))
    p0 = (11 + R) - 16; p1 = (15 + R) - 16
    p0 = max(p0, 0); p1 = max(p1, p0 + 2)
    assert p1 + 1 < 8
    sched[p0].insert(0, lambda: PV(0, 0, 4)); sched[p0+1].insert(0, lambda: PV(0, 4, 8))
    sched[p1].insert(0, lambda: PV(1, 0, 4)); sched[p1+1].insert(0, lambda: PV(1, 4, 8))
    a.raw(".p2align 6")
    a("L_loop:")
    for x in range(16):
        a(f"s_waitcnt vmcnt({R-1})")
        load(x)
        for t in sched[x]: t()
    def next_desc(tag):
        a(f"""
        s_cmp_lg_u32 s{sIdx}, 64
        s_cbranch_scc1 L_noswap{tag}
        v_mov_b32 v{vD0}, v{vD0+3}
        v_mov_b32 v{vD0+1}, v{vD0+4}
        v_mov_b32 v{vD0+2}, v{vD0+5}
        s_mov_b32 s{sIdx}, 0
        L_noswap{tag}:
        """)
        fetch_desc()
    def flag_store():
        a(f"""
        s_lshl_b32 s3, s{sHead}, 5
        s_add_u32 s3, s3, s{sSl}
        s_lshl_b32 s3, s3, 7
        v_lshlrev_b32 v{vX}, 4, v1
        v_add_u32 v{vX}, s3, v{vX}
        v_mov_b32 v{vT}, s{sNonce}
        v_mov_b32 v{vT+1}, s{sNonce}
        v_mov_b32 v{vT+2}, s{sNonce}
        v_mov_b32 v{vT+3}, s{sNonce}
        s_cmp_eq_u32 s3, 0
        s_movk_i32 s3, 0xff
        s_cselect_b32 s3, s3, 0
        s_or_b32 exec_lo, s3, 0xff00
        s_mov_b32 exec_hi, 0
        global_store_dwordx4 v{vX}, v[{vT}:{vT+3}], s[18:19] sc1
        s_mov_b64 exec, -1
        s_mov_b32 s{sSt}, 0
        """)
    a(f"""
    s_cmp_eq_u32 s{sSt}, 0
    s_cbranch_scc1 L_st_done
    s_cmp_eq_u32 s{sSt}, 2
    s_cbranch_scc1 L_st_load
    v_readfirstlane_b32 s{sNonce}, v{vNo}
    s_cmp_eq_u32 s{sNonce}, 0
    s_cbranch_scc1 L_st_load
    """)
    flag_store()
    a(f"""
    s_branch L_st_done
    L_st_load:
    v_mov_b32 v{vX}, 0
    global_load_dword v{vNo}, v{vX}, s[16:17] sc1
    s_mov_b32 s{sSt}, 1
    L_st_done:
    """)
    next_desc(0)
    a(f"s_sub_u32 s{sIt}, s{sIt}, 1\ns_cmp_gt_u32 s{sIt}, {B}\ns_cbranch_scc1 L_loop")
    a.check_backedge("L_loop")
    a("L_burst:")
    for x in range(8): load(x)
    a("s_waitcnt vmcnt(12)")
    PV(0, 0, 8)
    for x in range(8, 12): load(x)
    a("s_waitcnt vmcnt(12)")
    PV(1, 0, 8)
    for x in range(12, 16): load(x)
    a("L_burst_qk:")
    a(f"""
    s_lshl_b32 s3, s{sIt}, 2
    s_add_u32 s3, s3, s{sJ}
    s_cmp_lg_u32 s3, 4
    s_cbranch_scc1 L_nopre
    s_cmp_lt_u32 s{sSl}, {32-C}
    s_cbranch_scc1 L_nopre
    global_load_dword v{vNo+1}, v{vFl}, s[18:19] offset:128 sc1
    L_nopre:
    s_waitcnt vmcnt(14)
    """)
    for e in range(4):
        if e: a(f"s_waitcnt vmcnt({14-2*e})")
        QK(e)
        if e: RED(e-1)
    RED(3); SM(True); RS(0, 16)
    a(f"s_sub_u32 s{sIt}, s{sIt}, 1\ns_cbranch_scc1 L_end")
    a.lines.pop(); a.hist.pop()
    a(f"s_cmp_eq_u32 s{sIt}, 0\ns_cbranch_scc1 L_drain")
    hist_d = list(a.hist)
    next_desc(1)
    a(f"s_cmp_gt_u32 s{sIt}, {B}\ns_cbranch_scc1 L_loop")
    a.check_backedge("L_loop")
    a("s_branch L_burst")
    a.check_backedge("L_burst")
    a.check_jump("L_burst", hist_jump)
    a.check_jump("L_burst_qk", hist_jump2)
    a("L_drain:")
    a.hist = hist_d
    x0, x1 = vX, vX+1
    a(f"""
    v_mov_b32 v{x1}, v{vL}
    v_lshrrev_b32 v{vX+2}, 5, v1
    v_and_b32 v{vX+3}, 15, v1
    v_permlane32_swap_b32 v{vL}, v{x1}
    v_lshlrev_b32 v{vX+2}, 9, v{vX+2}
    v_add_f32 v{vL}, v{vL}, v{x1}
    v_lshl_add_u32 v{vX+2}, v{vX+3}, 5, v{vX+2}
    v_mov_b32 v{x1}, v{vL}
    v_bfe_u32 v{vX+3}, v1, 4, 1
    v_lshl_add_u32 v{vX+2}, v{vX+3}, 4, v{vX+2}
    v_permlane16_swap_b32 v{vL}, v{x1}
    s_lshl_b32 s3, s{sJ}, 12
    v_add_f32 v{vL}, v{vL}, v{x1}
    v_add_u32 v{vX+2}, s3, v{vX+2}
    v_lshlrev_b32 v{x1}, 4, v1
    s_lshl_b32 s3, s{sJ}, 2
    v_add_u32 v{vX+3}, s3, v{x1}
    s_mov_b64 exec, 0xf
    ds_write_b32 v{vX+3}, v{vMC} offset:{LDS_M}
    ds_write_b32 v{vX+3}, v{vL} offset:{LDS_L}
    s_mov_b64 exec, -1
    s_lshl_b32 s3, s{sJ}, 4
    v_mov_b32 v{vX+4}, s3
    s_lshl_b32 s3, s{sJ}, 10
    v_add_u32 v{vX+5}, s3, v{x1}
    s_waitcnt vmcnt(4)
    """)
    PV(0, 0, 8)
    a("s_waitcnt vmcnt(0)")
    PV(1, 0, 8)
    a(f"""
    s_cmp_lg_u32 s{sJ}, 0
    s_cbranch_scc1 L_chk_ok
    s_cmp_eq_u32 s{sSt}, 0
    s_cbranch_scc1 L_have_tag
    s_mov_b32 s52, s54
    s_mov_b32 s53, 0
    s_waitcnt lgkmcnt(0)
    s_atomic_cmpswap s[52:53], s[16:17], 0x0 glc
    s_waitcnt lgkmcnt(0)
    s_cmp_eq_u32 s52, 0
    s_cselect_b32 s{sNonce}, s54, s52
    """)
    flag_store()
    a(f"""
    L_have_tag:
    s_cmp_lt_u32 s{sSl}, {99 if nononce else 32-C}
    s_cbranch_scc1 L_chk_ok
    L_chk:
    v_cmp_ne_u32 vcc, s{sNonce}, v{vNo+1}
    s_cbranch_vccz L_chk_ok
    global_load_dword v{vNo+1}, v{vFl}, s[18:19] offset:128 sc1
    s_waitcnt vmcnt(0)
    s_branch L_chk
    L_chk_ok:
    """)
    stamp(3)
    for t in range(8):
        for q in range(4):
            a(f"v_permlane32_swap_b32 v{vA+4*t+q}, v{vA+4*(t+8)+q}")
        for q in (0, 2):
            pass
    for t in range(8):
        for q in (0, 2):
            r = vA+4*t+q; r2 = vA+4*(t+8)+q
            a(f"v_pk_add_f32 v[{r}:{r+1}], v[{r}:{r+1}], v[{r2}:{r2+1}]")
    for t in range(4):
        for q in range(4):
            a(f"v_permlane16_swap_b32 v{vA+4*t+q}, v{vA+4*(t+4)+q}")
    vW = vK
    for q in range(4):
        for t in range(4):
            a(f"v_add_f32 v{vW+4*q+t}, v{vA+4*t+q}, v{vA+4*(t+4)+q}")
        a(f"ds_write_b128 v{vX+2}, v[{vW+4*q}:{vW+4*q+3}] offset:{LDS_O + q*1024}")
    a(f"""
    v_mov_b32 v{vX+7}, 0
    s_waitcnt lgkmcnt(0)
    """)
    stamp(4)
    a(f"""
    s_barrier
    ds_read_b128 v[{vS}:{vS+3}], v{vX+4} offset:{LDS_M}
    ds_read_b128 v[{vS+4}:{vS+7}], v{vX+4} offset:{LDS_L}
    """)
    for w in range(4):
        a(f"ds_read_b128 v[{vV+4*w}:{vV+4*w+3}], v{vX+5} offset:{LDS_O + w*4096}")
    if stamps: a("s_waitcnt lgkmcnt(0)")
    a(f"""
    s_waitcnt lgkmcnt(4)
    v_max_f32 v{vM}, v{vS}, v{vS+1}
    v_max3_f32 v{vM}, v{vM}, v{vS+2}, v{vS+3}
    """)
    for w in range(4): a(f"v_sub_f32 v{vS+w}, v{vS+w}, v{vM}")
    for w in range(4): a(f"v_exp_f32 v{vS+w}, v{vS+w}")
    a(f"v_mul_f32 v{vM+1}, v{vS}, v{vS+4}")
    for w in range(1, 4): a(f"v_fmac_f32 v{vM+1}, v{vS+w}, v{vS+4+w}")
    a("s_waitcnt lgkmcnt(0)")
    for t in range(4): a(f"v_mul_f32 v{vW+t}, v{vS}, v{vV+t}")
    for w in range(1, 4):
        for t in range(4): a(f"v_fmac_f32 v{vW+t}, v{vS+w}, v{vV+4*w+t}")
    for t in range(4): a(f"v_min_u32 v{vW+t}, -2, v{vW+t}")
    a(f"""
    v_min_u32 v{vM}, -2, v{vM}
    v_min_u32 v{vM+1}, -2, v{vM+1}
    global_store_dwordx4 v{vPo}, v[{vW}:{vW+3}], s[18:19] sc1
    v_mov_b32 v{vM+2}, v{vM}
    v_mov_b32 v{vM+3}, v{vM+1}
    s_mov_b64 exec, 0xff
    global_store_dwordx4 v{vPm}, v[{vM}:{vM+3}], s[18:19] sc1
    s_mov_b64 exec, -1
    s_mov_b32 s{sRank}, s{sSl}
    """)
    stamp(5)
    a(f"""
    s_cmp_lt_u32 s{sRank}, {32-C}
    s_cbranch_scc1 L_fin
    """)
    assert C == 8
    vCo, vCm = vK+16, vK+20
    vO, vML = vV, vV+16
    a(f"""
    s_sub_u32 s3, s{sRank}, {32-C}
    s_lshl_b32 s3, s3, 2
    s_add_u32 s3, s3, s{sJ}
    s_lshr_b32 s44, s3, 3
    s_and_b32 s45, s3, 7
    s_lshl_b32 s39, s{sHead}, 2
    s_add_u32 s39, s39, s44
    v_lshrrev_b32 v{vX}, 3, v1
    v_and_b32 v{vX+1}, 7, v1
    v_lshlrev_b32 v{vCo}, 10, v{vX}
    v_lshl_add_u32 v{vCo}, v{vX+1}, 4, v{vCo}
    s_lshl_b32 s3, s39, 15
    s_lshl_b32 s46, s45, 7
    s_add_u32 s3, s3, s46
    s_add_u32 s3, s3, {DA_OFF}
    v_add_u32 v{vCo}, s3, v{vCo}
    s_lshl_b32 s3, s39, 12
    s_add_u32 s3, s3, {ML_OFF}
    v_lshlrev_b32 v{vCm}, 7, v{vX}
    v_add_u32 v{vCm}, s3, v{vCm}
    v_add_u32 v{vCo+1}, 0x2000, v{vCo}
    v_add_u32 v{vCo+2}, 0x4000, v{vCo}
    v_add_u32 v{vCo+3}, 0x6000, v{vCo}
    s_mov_b64 s[56:57], -1
    s_mov_b64 s[58:59], -1
    s_mov_b64 s[60:61], -1
    s_mov_b64 s[62:63], -1
    s_lshr_b32 s3, s44, 1
    s_lshl_b32 s3, s3, 13
    s_lshl_b32 s46, s{sHead}, 10
    s_add_u32 s3, s3, s46
    s_and_b32 s46, s44, 1
    s_lshl_b32 s46, s46, 9
    s_add_u32 s3, s3, s46
    s_lshl_b32 s46, s45, 6
    s_add_u32 s3, s3, s46
    v_lshrrev_b32 v{vX+2}, 4, v1
    v_lshlrev_b32 v{vX+2}, 1, v{vX+2}
    v_lshl_add_u32 v{vX+2}, v{vX+1}, 3, v{vX+2}
    v_add_u32 v{vX+2}, s3, v{vX+2}
    L_poll:
    """)
    for i in range(4):
        a(f"""
        s_mov_b64 exec, s[{56+2*i}:{57+2*i}]
        s_cbranch_execz L_skip{i}
        global_load_dwordx4 v[{vO+4*i}:{vO+4*i+3}], v{vCo+i}, s[18:19] sc1
        global_load_dwordx2 v[{vML+2*i}:{vML+2*i+1}], v{vCm}, s[18:19] offset:{1024*i} sc1
        L_skip{i}:
        """)
    a("s_mov_b64 exec, -1\ns_waitcnt vmcnt(0)")
    for i in range(4):
        a(f"""
        v_max3_u32 v{vX+3}, v{vO+4*i}, v{vO+4*i+1}, v{vO+4*i+2}
        v_max3_u32 v{vX+4}, v{vO+4*i+3}, v{vML+2*i}, v{vML+2*i+1}
        v_max_u32 v{vX+3}, v{vX+3}, v{vX+4}
        v_cmp_eq_u32 s[{56+2*i}:{57+2*i}], -1, v{vX+3}
        """)
    a(f"""
    s_or_b64 s[64:65], s[56:57], s[58:59]
    s_or_b64 s[66:67], s[60:61], s[62:63]
    s_or_b64 s[64:65], s[64:65], s[66:67]
    """)
    if psleep:
        a(f"s_cbranch_scc0 L_poll_done\ns_sleep {psleep}\ns_branch L_poll\nL_poll_done:")
    else:
        a("s_cbranch_scc1 L_poll")
    a.check_backedge("L_poll")
    stamp(6)
    m = vX+3; t = vX+4
    a(f"""
    v_max_f32 v{m}, v{vML}, v{vML+2}
    v_max3_f32 v{m}, v{m}, v{vML+4}, v{vML+6}
    v_max_f32_dpp v{m}, v{m}, v{m} row_ror:8 row_mask:0xf bank_mask:0xf
    v_mov_b32 v{t}, v{m}
    v_permlane16_swap_b32 v{m}, v{t}
    v_max_f32 v{m}, v{m}, v{t}
    v_mov_b32 v{t}, v{m}
    v_permlane32_swap_b32 v{m}, v{t}
    v_max_f32 v{m}, v{m}, v{t}
    """)
    for i in range(4): a(f"v_sub_f32 v{vML+2*i}, v{vML+2*i}, v{m}")
    for i in range(4): a(f"v_exp_f32 v{vML+2*i}, v{vML+2*i}")
    a(f"v_mul_f32 v{m}, v{vML}, v{vML+1}")
    for i in range(1, 4): a(f"v_fmac_f32 v{m}, v{vML+2*i}, v{vML+2*i+1}")
    for k in range(4): a(f"v_mul_f32 v{vO+k}, v{vML}, v{vO+k}")
    for i in range(1, 4):
        for k in range(4): a(f"v_fmac_f32 v{vO+k}, v{vML+2*i}, v{vO+4*i+k}")
    a(f"""
    v_mov_b32 v{t}, v{m}
    v_permlane32_swap_b32 v{vO}, v{vO+2}
    v_permlane32_swap_b32 v{vO+1}, v{vO+3}
    v_permlane32_swap_b32 v{m}, v{t}
    v_add_f32 v{vO}, v{vO}, v{vO+2}
    v_add_f32 v{vO+1}, v{vO+1}, v{vO+3}
    v_add_f32 v{m}, v{m}, v{t}
    v_mov_b32 v{t}, v{m}
    v_permlane16_swap_b32 v{vO}, v{vO+1}
    v_permlane16_swap_b32 v{m}, v{t}
    v_add_f32 v{vO}, v{vO}, v{vO+1}
    v_add_f32 v{m}, v{m}, v{t}
    v_add_f32_dpp v{vO}, v{vO}, v{vO} row_ror:8 row_mask:0xf bank_mask:0xf
    v_add_f32_dpp v{m}, v{m}, v{m} row_ror:8 row_mask:0xf bank_mask:0xf
    v_rcp_f32 v{m}, v{m}
    s_mov_b32 exec_lo, 0x00ff00ff
    s_mov_b32 exec_hi, 0x00ff00ff
    v_mul_f32 v{vO}, v{vO}, v{m}
    v_cvt_pk_bf16_f32 v{vO}, v{vO}, v{vO}
    global_store_short v{vX+2}, v{vO}, s[14:15]
    L_fin:
    """)
    if stamps:
        a(f"""
        s_mov_b64 exec, -1
        s_cmp_lt_u32 s{sRank}, {32-C}
        s_cbranch_scc0 L_st1
        s_memrealtime s[100:101]
        L_st1:
        s_getreg_b32 s98, hwreg(HW_REG_XCC_ID)
        s_getreg_b32 s99, hwreg(HW_REG_HW_ID)
        s_lshl_b32 s3, s2, 2
        s_add_u32 s3, s3, s{sJ}
        s_lshl_b32 s3, s3, 6
        s_add_u32 s3, s3, 0x20000000
        v_mov_b32 v{x0}, s3
        s_waitcnt lgkmcnt(0)
        """)
        for i in range(7):
            a(f"v_mov_b32 v{vV+2*i}, s{STR[i]}\nv_mov_b32 v{vV+2*i+1}, s{STR[i]+1}")
        a(f"v_mov_b32 v{vV+14}, s98\nv_mov_b32 v{vV+15}, s99\ns_mov_b64 exec, 1")
        for i in range(4):
            a(f"global_store_dwordx4 v{x0}, v[{vV+4*i}:{vV+4*i+3}], s[18:19] offset:{16*i}")
    a("L_end:\ns_endpgm")
    if diag:
        from diag import diag_kernel
        diag_kernel(a, 1024, **diag)
    def kd(name, nv, ns):
        a.raw(f""".amdhsa_kernel {name}
  .amdhsa_next_free_vgpr {nv}
  .amdhsa_next_free_sgpr {ns}
  .amdhsa_accum_offset {min(256,(nv+3)//4*4)}
  .amdhsa_group_segment_fixed_size 0
  .amdhsa_kernarg_size 64
  .amdhsa_user_sgpr_count 2
  .amdhsa_user_sgpr_kernarg_segment_ptr 1
  .amdhsa_system_sgpr_workgroup_id_x 1
  .amdhsa_float_denorm_mode_32 3
.end_amdhsa_kernel""")
    a.raw('.section .rodata,"a"\n.p2align 6')
    kd(KNAME, nvg, 102)
    if diag:
        a.raw(".p2align 6")
        kd("diag_kernel", 64, 32)
    return a.text()

if __name__ == "__main__":
    out = sys.argv[1]
    kw = eval("dict(" + (sys.argv[2] if len(sys.argv) > 2 else "") + ")")
    open(out, "w").write(gen(**kw))
```

```python
import re

TRANS = ("v_exp_f32", "v_log_f32", "v_rcp_f32", "v_rsq_f32", "v_sqrt_f32", "v_sin_f32", "v_cos_f32")

def regs_of(tok):
    tok = tok.strip()
    neg = tok.startswith("-")
    if neg: tok = tok[1:]
    m = re.fullmatch(r"abs\((.*)\)", tok) or re.fullmatch(r"\|(.*)\|", tok)
    if m: tok = m.group(1)
    m = re.fullmatch(r"([vsa])\[(\d+):(\d+)\]", tok)
    if m: return [(m.group(1), i) for i in range(int(m.group(2)), int(m.group(3)) + 1)]
    m = re.fullmatch(r"([vsa])(\d+)", tok)
    if m: return [(m.group(1), int(m.group(2)))]
    if tok == "vcc": return [("s", "vcc_lo"), ("s", "vcc_hi")]
    if tok in ("vcc_lo", "vcc_hi"): return [("s", tok)]
    if tok == "exec": return [("s", "exec_lo"), ("s", "exec_hi")]
    if tok in ("exec_lo", "exec_hi"): return [("s", tok)]
    if tok == "m0": return [("s", "m0")]
    return []

class Ins:
    def __init__(self, text):
        self.text = text
        t = text.split(";")[0].strip()
        self.op = t.split()[0]
        rest = t[len(self.op):].strip()
        parts = [p.strip() for p in re.split(r",(?![^\[]*\])", rest)] if rest else []
        self.mods = ""
        if parts:
            last = parts[-1].split(None, 1)
            if len(last) > 1 and not last[0].startswith("hwreg"):
                parts[-1] = last[0]; self.mods = last[1]
        self.ops = parts
        op = self.op
        self.is_mfma = op.startswith("v_mfma")
        self.is_valu = op.startswith("v_") and not self.is_mfma
        self.is_trans = any(op.startswith(x) for x in TRANS)
        self.is_dpp = ("_dpp" in op) or ("quad_perm" in self.mods) or ("row_" in self.mods)
        self.is_permlane = op.startswith("v_permlane")
        self.is_lane = op.startswith("v_readlane") or op.startswith("v_readfirstlane") or op.startswith("v_writelane")
        self.is_vmem = op.startswith("buffer_") or op.startswith("global_") or op.startswith("flat_")
        self.is_ds = op.startswith("ds_")
        self.is_salu = op.startswith("s_")
        self.is_store = self.is_vmem and ("store" in op or "atomic" in op)
        self.passes = 0
        if self.is_mfma:
            self.passes = 2 if "4x4x4" in op else 4 if "16x16" in op else 8
        R = [regs_of(p) for p in parts]
        w, r = [], []
        if self.is_mfma:
            w = R[0]; self.A = R[1]; self.B = R[2]; self.C = R[3]; r = R[1] + R[2] + R[3]
        elif self.is_permlane and "swap" in op:
            w = R[0] + R[1]; r = R[0] + R[1]
        elif op.startswith("v_cmp"):
            w = R[0]; r = sum(R[1:], [])
            if op.startswith("v_cmpx"): w = w + regs_of("exec")
        elif self.is_valu:
            w = R[0]; r = sum(R[1:], [])
            if op.startswith(("v_add_co", "v_sub_co", "v_addc_co", "v_subb_co")):
                w = R[0] + R[1]; r = sum(R[2:], [])
            if op.startswith(("v_fmac", "v_writelane", "v_dot2c")) or self.is_dpp:
                r = r + R[0]
            if op.startswith("v_cndmask") and len(parts) == 3:
                r = r + regs_of("vcc")
        elif self.is_vmem:
            if "load" in op and " lds" not in (" " + self.mods) and "load_lds" not in op:
                w = R[0]; r = sum(R[1:], [])
            elif "atomic" in op and "sc0" in self.mods:
                if op.startswith("buffer_"):
                    w = R[0]; r = sum(R, [])
                else:
                    w = R[0]; r = sum(R[1:], [])
            else:
                r = sum(R, [])
        elif self.is_ds:
            if op.startswith(("ds_read", "ds_bpermute", "ds_permute", "ds_swizzle")) or "_rtn" in op:
                w = R[0]; r = sum(R[1:], [])
            else:
                r = sum(R, [])
        elif self.is_salu:
            if op.startswith(("s_cmp", "s_cbranch", "s_branch", "s_waitcnt", "s_nop", "s_barrier", "s_endpgm", "s_setprio", "s_sleep", "s_bitcmp")):
                r = sum(R, [])
            else:
                w = R[0] if R else []; r = sum(R[1:], [])
                if "saveexec" in op: w = w + regs_of("exec"); r = r + regs_of("exec")
        self.w = set(w); self.r = set(r)
        self.states = 1
        if op == "s_nop": self.states = int(parts[0]) + 1
        self.lanesel = set()
        if op.startswith("v_readlane") or op.startswith("v_writelane"):
            self.lanesel = set(R[2]) if len(R) > 2 else set()
        self.store_data = set()
        if self.is_vmem and "store" in op and ("x4" in op or "x3" in op):
            self.store_data = set(R[0]) if op.startswith("buffer_") else set(R[1])

def need(p, c):
    n = 0
    pv = {x for x in p.w if x[0] in "va"}
    ps = {x for x in p.w if x[0] == "s"}
    if p.is_valu:
        if pv & c.r:
            if c.is_dpp: n = max(n, 2)
            if c.is_permlane: n = max(n, 2)
            if c.op.startswith(("v_readlane", "v_readfirstlane")): n = max(n, 1)
            if c.is_mfma: n = max(n, 2)
            if p.is_trans and (c.is_valu or c.is_mfma) and not c.is_trans: n = max(n, 1)
            if p.is_trans and c.is_trans: n = max(n, 1)
        if ps:
            if c.is_vmem and (ps & c.r): n = max(n, 5)
            if c.lanesel & ps: n = max(n, 4)
            if (c.is_valu or c.is_mfma) and (ps & c.r): n = max(n, 2)
            if c.is_salu and (ps & c.r): n = max(n, 1)
            ex = set(regs_of("exec"))
            if ps & ex:
                if c.is_dpp: n = max(n, 5)
                if c.is_lane or c.is_permlane or c.is_mfma: n = max(n, 4)
    if p.is_mfma:
        k = {2: 0, 4: 1, 8: 2}[p.passes]
        if c.is_mfma:
            if pv & set(c.A + c.B): n = max(n, [5, 8, 12][k])
            if pv & set(c.C):
                if set(c.C) == pv and c.passes == p.passes: n = max(n, [2, 0, 0][k])
                else: n = max(n, [4, 6, 10][k])
            elif pv & c.w: n = max(n, [5, 8, 12][k])
        elif c.is_valu or c.is_vmem or c.is_ds:
            if pv & (c.r | c.w): n = max(n, [5, 8, 12][k])
        if c.is_valu and (set(p.C) & c.w): n = max(n, [1, 3, 7][k])
    if p.store_data and (p.store_data & c.w) and (c.is_valu or c.is_mfma or c.is_vmem or c.is_ds):
        n = max(n, 2)
    if p.is_salu and ("s", "m0") in p.w and (c.is_vmem and ("lds" in c.mods or "load_lds" in c.op)):
        n = max(n, 1)
    return n

class Asm:
    def __init__(self):
        self.lines = []
        self.hist = []
        self.nops = 0
        self.pending = set()
        self.defined = set()
        self.LONG = ("L_end", "L_drain", "L_burst", "L_fin", "L_loop", "L_poll", "L_spin", "L_last", "L_restart", "L_mgr")
    def raw(self, s):
        self.lines.append(s)
    def label(self, name, barrier_pad=True):
        self.lines.append(name + ":")
        self.defined.add(name); self.pending.discard(name)
    def __call__(self, text):
        for t in text.split("\n"):
            t = t.strip()
            if not t or t.startswith(";"):
                if t: self.lines.append("    " + t)
                continue
            if t.endswith(":"):
                self.label(t[:-1]); continue
            self.emit(Ins(t))
    def emit(self, c):
        dist = 0; pad = 0
        c.region = frozenset(self.pending)
        between = []
        for p in reversed(self.hist):
            nd = need(p, c)
            if nd:
                d = sum(q.states for q in between if not (q.region - p.region - c.region))
                if nd > d: pad = max(pad, nd - d)
            between.append(p)
        while pad > 0:
            k = min(pad, 16)
            nop = Ins(f"s_nop {k-1}")
            nop.region = frozenset(self.pending)
            self.lines.append(nop); self.hist.append(nop); self.nops += 1
            pad -= k
        self.lines.append(c); self.hist.append(c)
        self.hist = self.hist[-80:]
        if c.op.startswith(("s_cbranch", "s_branch")):
            t = c.ops[0]
            if t not in self.defined and not t.startswith(self.LONG): self.pending.add(t)
    def check_backedge(self, head_label):
        idx = self.lines.index(head_label + ":")
        body = [x for x in self.lines[idx:] if isinstance(x, Ins)]
        hist = list(self.hist)
        for c in body[:60]:
            between = []
            for p in reversed(hist):
                nd = need(p, c)
                if nd:
                    dist = sum(q.states for q in between if not (q.region - p.region - c.region))
                    assert nd <= dist, f"back-edge hazard: {p.text} -> {c.text} need {nd} have {dist}"
                between.append(p)
            hist.append(c)
    def check_jump(self, target_label, hist):
        idx = self.lines.index(target_label + ":")
        body = [x for x in self.lines[idx:] if isinstance(x, Ins)]
        hist = list(hist)
        for c in body[:60]:
            between = []
            for p in reversed(hist):
                nd = need(p, c)
                if nd:
                    dist = sum(q.states for q in between if not (q.region - p.region - c.region))
                    assert nd <= dist, f"jump hazard: {p.text} -> {c.text} need {nd} have {dist}"
                between.append(p)
            hist.append(c)
    def text(self):
        return "\n".join(("    " + x.text) if isinstance(x, Ins) else x for x in self.lines) + "\n"
```

```python
import sys, math, struct
from asmlib import Asm
KNAME = "standalone__paged_block_table_kv_radixattention__decode_kernel"
HDR = open("standalone__paged_block_table_kv_radixattention__decode.s.ref").read().split("; Override launch")[0]
C_SCALE = 0x3db8aa3b

vKo, vVo = 2, 3
vQ = 4
vD0 = 12
vM, vMC, vL, vAl = 18, 19, 20, 21
vAq = 22
vP = 26
vS = 28
vT = 44
vK = 52
vV = 84
vA = 116
vNeg = 180
vPo, vPm, vFl = 181, 182, 183
vX = 184
vTb = 192
vNo = 208
vPrA, vProg, vPrL, vSib = 210, 211, 212, 214
NVG = 216
sJ, sHead, sSl = 36, 37, 38
sBase = 43
sOff = 48
sIncL = 55
sMask = 56
sAccS, sAccL, sIncS, sTag = 68, 69, 70, 71
sIdx, sIt = 72, 73
sModd, sMhi = 74, 76
sSelLo, sSelHi, sC = 78, 79, 80
sN, sS, sNb0, sNb1, sC0, sC1 = 81, 82, 83, 84, 85, 86
sSt, sFb = 87, 42
OOB = 0xF0000000
PR_OFF, ML_OFF, DA_OFF = 0x9000, 0x10000, 0x40000
LDS_S, LDS_M, LDS_L, LDS_O = 16384, 16448, 16512, 20480
R = 6

def kslot(e, h): return vK + (2*e + h)*4
def vslot(h, e): return vV + (4*h + e)*4

def gen(pol="nt", stamps=False, lds=98304, diag=None, P0=8, B=1, blk=False, trace=None, nvg=NVG,
        xcc=(0.7, 0, 0.7, 0, 1.15, 0.1, 1.0, 0.05), base=1.5, sens=8.0,
        gain=0.25, bias=0.36, umax=0.75, umin=0.75, SP=8, XPL=13, dbg=False, pbf16=False, remap=False, PD=1, psl=4):
    a = Asm()
    C = 8
    STR = [28, 30, 32, 34, 88, 90, 100]
    def stamp(i):
        if trace and i in (1, 2, 4, 5): return
        if dbg and i in (1, 2):
            a(f"s_mov_b64 s[{STR[i]}:{STR[i]+1}], 0"); return
        if stamps: a(f"s_memrealtime s[{STR[i]}:{STR[i]+1}]")
    def load(x):
        if x < 8:
            e, h = x >> 1, x & 1
            r = kslot(e, h)
            a(f"buffer_load_dwordx4 v[{r}:{r+3}], v{vKo}, s[20:23], s{sOff+e} offen offset:{h*256} {pol}")
        else:
            h, e = (x - 8) >> 2, (x - 8) & 3
            r = vslot(h, e)
            a(f"buffer_load_dwordx4 v[{r}:{r+3}], v{vVo}, s[24:27], s{sOff+e} offen offset:{h*256} {pol}")
        if x % SP == SP - 1:
            a(f"""
            v_add_u32 v{vProg}, 1, v{vProg}
            s_mov_b64 exec, 1
            global_store_dword v{vPrA}, v{vProg}, s[18:19]
            s_mov_b64 exec, -1
            """)
        if x == XPL:
            a(f"global_load_dwordx2 v[{vSib}:{vSib+1}], v{vPrL}, s[18:19] nt")
    def extra(y):
        y %= 16
        return (1 if y % SP == SP - 1 else 0) + (1 if y == XPL else 0)
    def cnt(target, now):
        return sum((1 if y > target else 0) + extra(y) for y in range(target, now))

    a.raw(HDR.rstrip("\n"))
    if diag:
        a.raw(f"; @launch kernel={KNAME} grid=(256,1,1) block=(256,1,1) lds={lds}")
        a.raw("; @launch kernel=diag_kernel grid=(1,1,1) block=(64,1,1) lds=0")
    else:
        a.raw(f"; @launch grid=(256,1,1) block=(256,1,1) lds={lds}")
    a.raw('.amdgcn_target "amdgcn-amd-amdhsa--gfx950"\n.text')
    a.raw(f".globl {KNAME}\n.p2align 8\n.type {KNAME},@function\n{KNAME}:")
    stamp(0)
    a(f"""
    s_load_dwordx16 s[4:19], s[0:1], 0
    s_cmp_ge_u32 s2, 256
    s_cbranch_scc1 L_end
    v_lshrrev_b32 v{vX}, 6, v0
    v_and_b32 v1, 63, v0
    s_lshr_b32 s{sHead}, s2, 3
    v_readfirstlane_b32 s{sJ}, v{vX}
    s_and_b32 s{sHead}, s{sHead}, 7
    """)
    if remap:
        a(f"""
        s_bfe_u32 s{sSl}, s2, 0x20001
        s_lshr_b32 s3, s2, 6
        s_lshl_b32 s3, s3, 2
        s_add_u32 s{sSl}, s{sSl}, s3
        s_andn2_b32 s3, 1, s2
        s_lshl_b32 s3, s3, 4
        s_add_u32 s{sSl}, s{sSl}, s3
        """)
    else:
        a(f"""
        s_and_b32 s{sSl}, s2, 7
        s_lshr_b32 s3, s2, 6
        s_lshl_b32 s3, s3, 3
        s_add_u32 s{sSl}, s{sSl}, s3
        """)
    a(f"""
    s_lshl_b32 s39, s{sHead}, 9
    v_lshrrev_b32 v{vX}, 4, v1
    v_bfe_u32 v{vX+1}, v1, 2, 2
    v_and_b32 v{vX+2}, 3, v1
    v_lshlrev_b32 v{vX+3}, 6, v{vX}
    v_lshl_add_u32 v{vKo}, v{vX+1}, 12, v{vX+3}
    v_lshl_add_u32 v{vKo}, v{vX+2}, 4, v{vKo}
    v_add_u32 v{vKo}, s39, v{vKo}
    v_and_b32 v{vX+4}, 15, v1
    v_lshlrev_b32 v{vVo}, 12, v{vX}
    v_lshl_add_u32 v{vVo}, v{vX+4}, 4, v{vVo}
    v_add_u32 v{vVo}, s39, v{vVo}
    v_lshl_add_u32 v{vX+5}, v{vX+1}, 4, v{vX+3}
    v_lshrrev_b32 v{vX+6}, 1, v{vX+2}
    v_lshl_add_u32 v{vX+5}, v{vX+6}, 13, v{vX+5}
    v_and_b32 v{vX+6}, 1, v1
    v_lshl_add_u32 v{vX+5}, v{vX+6}, 9, v{vX+5}
    s_lshl_b32 s39, s39, 1
    v_add_u32 v{vX+5}, s39, v{vX+5}
    v_lshlrev_b32 v{vX+6}, 5, v0
    v_add_u32 v{vX+7}, 0x2000, v{vX+6}
    s_lshl_b32 s3, s{sSl}, {4 if blk else 2}
    s_mov_b32 s22, 201326592
    s_mov_b32 s23, 0x20000
    s_mov_b32 s26, 201326592
    s_mov_b32 s27, 0x20000
    s_waitcnt lgkmcnt(0)
    s_load_dwordx2 s[40:41], s[12:13], 0
    s_add_u32 s44, s10, s3
    s_addc_u32 s45, s11, 0
    """)
    if blk:
        a(f"s_load_dwordx4 s[{sOff}:{sOff+3}], s[44:45], 0")
    else:
        for e in range(4): a(f"s_load_dword s{sOff+e}, s[44:45], {128*e}")
    RB = 512 if pbf16 else 1024
    lgRB = 9 if pbf16 else 10
    a(f"""
    s_load_dword s53, s[18:19], 0
    global_load_dwordx4 v[{vTb}:{vTb+3}], v{vX+6}, s[10:11]
    global_load_dwordx4 v[{vTb+4}:{vTb+7}], v{vX+6}, s[10:11] offset:16
    global_load_dwordx4 v[{vTb+8}:{vTb+11}], v{vX+7}, s[10:11]
    global_load_dwordx4 v[{vTb+12}:{vTb+15}], v{vX+7}, s[10:11] offset:16
    global_load_dwordx4 v[{vQ}:{vQ+3}], v{vX+5}, s[4:5]
    global_load_dwordx4 v[{vQ+4}:{vQ+7}], v{vX+5}, s[4:5] offset:256
    s_mov_b32 s20, s6
    s_and_b32 s21, s7, 0xffff
    s_mov_b32 s24, s8
    s_and_b32 s25, s9, 0xffff
    s_lshl_b32 s3, s{sHead}, 2
    s_add_u32 s3, s3, s{sJ}
    s_lshl_b32 s3, s3, 5
    s_add_u32 s3, s3, s{sSl}
    s_lshl_b32 s39, s3, {lgRB}
    s_add_u32 s39, s39, {DA_OFF}
    v_lshlrev_b32 v{vPo}, {3 if pbf16 else 4}, v1
    v_add_u32 v{vPo}, s39, v{vPo}
    s_lshl_b32 s39, s3, 7
    s_add_u32 s39, s39, {ML_OFF}
    v_lshlrev_b32 v{vPm}, 4, v1
    v_add_u32 v{vPm}, s39, v{vPm}
    s_cmp_lg_u32 s{sJ}, 0
    s_cbranch_scc1 L_noclear
    v_mov_b64 v[{vS}:{vS+1}], -1
    v_mov_b64 v[{vS+2}:{vS+3}], -1
    v_add_u32 v{vS+4}, {32*RB}, v{vPo}
    v_add_u32 v{vS+5}, {64*RB}, v{vPo}
    v_add_u32 v{vS+6}, {96*RB}, v{vPo}
    v_lshrrev_b32 v{vS+7}, 3, v1
    v_mul_u32_u24 v{vS+7}, {4096-128}, v{vS+7}
    v_add_u32 v{vS+7}, v{vS+7}, v{vPm}
    """)
    for r in (vPo, vS+4, vS+5, vS+6):
        if pbf16: a(f"global_store_dwordx2 v{r}, v[{vS}:{vS+1}], s[18:19] sc1")
        else: a(f"global_store_dwordx4 v{r}, v[{vS}:{vS+3}], s[18:19] sc1")
    a(f"""
    s_mov_b32 exec_hi, 0
    global_store_dwordx4 v{vS+7}, v[{vS}:{vS+3}], s[18:19] sc1
    s_mov_b64 exec, -1
    L_noclear:
    s_lshl_b32 s46, s{sJ}, 14
    s_and_b32 s3, s2, 7
    s_lshl_b32 s3, s3, 9
    s_add_u32 s3, s3, {PR_OFF}
    v_lshlrev_b32 v{vPrL}, 3, v1
    v_add_u32 v{vPrL}, s3, v{vPrL}
    s_lshr_b32 s39, s2, 3
    s_lshl_b32 s39, s39, 2
    s_add_u32 s39, s39, s{sJ}
    s_lshl_b32 s39, s39, 2
    s_add_u32 s3, s3, s39
    v_mov_b32 v{vPrA}, s3
    v_mov_b32 v{vProg}, 0
    s_waitcnt lgkmcnt(0)
    """)
    for e in range(4):
        a(f"s_lshl_b32 s{sOff+e}, s{sOff+e}, 16\ns_add_u32 s{sOff+e}, s{sOff+e}, s46")
    a(f"""
    s_cmp_le_i32 s40, 0
    s_cselect_b32 s{sC0}, 0x8000, s40
    s_cmp_gt_u32 s{sC0}, 2047
    s_cselect_b32 s47, 1, 0
    s_cbranch_scc0 L_noearly
    """)
    for x in range(P0): load(x)
    YOUNG = cnt(-1, P0) - extra(-1)
    a("s_branch L_early_done\nL_noearly:")
    for i in range(0, 32, 2): a(f"v_mov_b64 v[{vV+i}:{vV+i+1}], 0")
    a("s_waitcnt vmcnt(0)\nL_early_done:")
    U = lambda lag: int(round(lag / sens * 2**24))
    a(f"""
    s_add_u32 s52, s53, 1
    s_max_u32 s52, s52, 1
    s_mov_b32 s54, s52
    s_mov_b32 s53, 0
    s_lshl_b32 s3, s2, 2
    s_add_u32 s3, s3, s{sJ}
    s_cmp_lg_u32 s3, 0
    s_cbranch_scc1 L_nocas
    s_atomic_cmpswap s[52:53], s[16:17], 0x0
    L_nocas:
    s_mov_b32 s64, 0x33333333
    s_mov_b32 s65, 0x33333333
    s_mov_b32 s66, 0xcccccccc
    s_mov_b32 s67, 0xcccccccc
    s_cmp_le_i32 s40, 0
    s_cselect_b64 s[64:65], 0, s[64:65]
    s_cmp_le_i32 s41, 0
    s_cselect_b32 s{sC1}, 0x8000, s41
    s_cselect_b64 s[66:67], 0, s[66:67]
    s_or_b64 s[64:65], s[64:65], s[66:67]
    s_min_u32 s{sC0}, s{sC0}, 0x8000
    s_min_u32 s{sC1}, s{sC1}, 0x8000
    s_add_u32 s{sNb0}, s{sC0}, 15
    s_lshr_b32 s{sNb0}, s{sNb0}, 4
    s_add_u32 s{sNb1}, s{sC1}, 15
    s_lshr_b32 s{sNb1}, s{sNb1}, 4
    """)
    for i in range(0, 64, 2): a(f"v_mov_b64 v[{vA+i}:{vA+i+1}], 0")
    a(f"""
    v_mov_b64 v[{vP}:{vP+1}], 0
    v_mov_b64 v[{vAq}:{vAq+1}], 0
    v_mov_b64 v[{vAq+2}:{vAq+3}], 0
    v_and_b32 v{vFl}, 31, v1
    s_lshl_b32 s3, s{sHead}, 5
    v_add_u32 v{vFl}, s3, v{vFl}
    v_lshlrev_b32 v{vFl}, 7, v{vFl}
    v_mov_b32 v{vL}, 0
    v_mov_b32 v{vM}, 0xf149f2ca
    v_mov_b32 v{vNeg}, 0xff800000
    s_mov_b32 s{sC}, {C_SCALE}
    v_mul_f32 v{vMC}, s{sC}, v{vM}
    s_mov_b32 s{sModd}, 0xf0f0f0f0
    s_mov_b32 s{sModd+1}, 0xf0f0f0f0
    s_mov_b32 s{sMhi}, 0xff00ff00
    s_mov_b32 s{sMhi+1}, 0xff00ff00
    s_mov_b32 s{sSelLo}, 0x05040100
    s_mov_b32 s{sSelHi}, 0x07060302
    s_getreg_b32 s3, hwreg(HW_REG_XCC_ID)
    s_and_b32 s3, s3, 7
    s_mov_b32 s{sBase}, {U(xcc[0] + base)}
    """)
    for x in range(1, 8):
        if U(xcc[x] + base) != U(xcc[0] + base):
            a(f"s_cmp_eq_u32 s3, {x}\ns_cselect_b32 s{sBase}, {U(xcc[x] + base)}, s{sBase}")
    a(f"""
    s_max_i32 s{sIncL}, s{sBase}, 0
    s_lshl_b32 s{sIncL}, s{sIncL}, 8
    s_sub_u32 s3, 0, s{sBase}
    s_max_i32 s{sIncS}, s3, 0
    s_lshl_b32 s{sIncS}, s{sIncS}, 8
    s_mov_b32 s{sFb}, 0
    s_cmp_lg_u32 s{sJ}, 0
    s_cbranch_scc1 L_w1
    s_waitcnt vmcnt({YOUNG+5})
    s_branch L_w2
    L_w1:
    s_waitcnt vmcnt({YOUNG})
    L_w2:
    """)
    stamp(1)
    a(f"""
    ds_write_b128 v{vX+6}, v[{vTb}:{vTb+3}]
    ds_write_b128 v{vX+6}, v[{vTb+4}:{vTb+7}] offset:16
    ds_write_b128 v{vX+7}, v[{vTb+8}:{vTb+11}]
    ds_write_b128 v{vX+7}, v[{vTb+12}:{vTb+15}] offset:16
    """)
    mk = [56, 58, 60, 62, 92, 94, 96, 98]
    for k in range(8):
        a(f"v_cmp_eq_u32 s[{mk[k]}:{mk[k]+1}], v{vTb+k}, v{vTb+8+k}")
    for k in range(1, 8):
        a(f"s_and_b64 s[{mk[k]}:{mk[k]+1}], s[{mk[k]}:{mk[k]+1}], s[{mk[k-1]}:{mk[k-1]+1}]")
    a(f"s_ff0_i32_b64 s3, s[{mk[7]}:{mk[7]+1}]")
    a(f"s_lshl_b32 s39, s{sJ}, 6\ns_add_u32 s39, s39, s3\ns_lshl_b32 s39, s39, 3")
    for k in range(7):
        a(f"s_bitcmp1_b64 s[{mk[k]}:{mk[k]+1}], s3\ns_addc_u32 s39, s39, 0")
    a(f"""
    s_cmp_lt_i32 s3, 0
    s_cselect_b32 s39, 2048, s39
    s_lshl_b32 s3, s{sJ}, 2
    v_mov_b32 v{vX}, s3
    v_mov_b32 v{vX+1}, s39
    ds_write_b32 v{vX}, v{vX+1} offset:{LDS_S}
    """)
    for i in range(8): a(f"v_cndmask_b32 v{vQ+i}, 0, v{vQ+i}, s[64:65]")
    a(f"""
    v_mov_b32 v{vX}, 0
    s_cmp_eq_u32 s{sJ}, 0
    s_cselect_b32 s{sSt}, 2, 0
    s_waitcnt lgkmcnt(0)
    s_barrier
    ds_read_b128 v[{vTb}:{vTb+3}], v{vX} offset:{LDS_S}
    s_waitcnt lgkmcnt(0)
    v_min_u32 v{vTb}, v{vTb}, v{vTb+1}
    v_min3_u32 v{vTb}, v{vTb}, v{vTb+2}, v{vTb+3}
    s_min_u32 s3, s{sNb0}, s{sNb1}
    v_readfirstlane_b32 s{sS}, v{vTb}
    s_min_u32 s{sS}, s{sS}, s3
    s_add_u32 s{sN}, s{sNb0}, s{sNb1}
    s_sub_u32 s{sN}, s{sN}, s{sS}
    s_sub_u32 s39, s{sS}, s{sNb0}
    s_lshl_b32 s66, s{sJ}, 2
    s_sub_u32 s64, s{sC0}, s66
    s_sub_u32 s65, s{sC1}, s66
    """)
    for r in range(2):
        b = vTb + r*8
        if not blk:
            a(f"""
            v_lshlrev_b32 v{b}, 5, v1
            s_add_u32 s3, s{sSl}, {r*2048}
            v_add_u32 v{b}, s3, v{b}
            """)
        else:
            a(f"""
            v_add_u32 v{b+4}, {64*r}, v1
            s_lshr_b32 s3, s{sN}, 7
            s_lshl_b32 s3, s3, 2
            v_cmp_gt_u32 vcc, s3, v{b+4}
            v_lshlrev_b32 v{b}, 5, v{b+4}
            v_and_b32 v{b+5}, 0xffffff80, v{b}
            v_add_u32 v{b}, s{sSl}, v{b}
            v_and_b32 v{b+4}, 3, v{b+4}
            s_lshl_b32 s3, s{sSl}, 2
            v_add3_u32 v{b+5}, v{b+5}, s3, v{b+4}
            v_cndmask_b32 v{b}, v{b}, v{b+5}, vcc
            """)
        a(f"""
        v_cmp_gt_u32 s[{56+r*4}:{57+r*4}], s{sNb0}, v{b}
        v_add_u32 v{b+1}, s39, v{b}
        v_cmp_gt_u32 s[{58+r*4}:{59+r*4}], s{sN}, v{b}
        v_cndmask_b32 v{b+1}, v{b+1}, v{b}, s[{56+r*4}:{57+r*4}]
        v_min_u32 v{b+2}, 2047, v{b+1}
        v_lshlrev_b32 v{b+2}, 2, v{b+2}
        v_add_u32 v{b+4}, 0x2000, v{b+2}
        v_cndmask_b32 v{b+2}, v{b+4}, v{b+2}, s[{56+r*4}:{57+r*4}]
        ds_read_b32 v{b+3}, v{b+2}
        """)
    a(f"""
    v_mov_b32 v{vX+4}, 0x3333
    v_mov_b32 v{vX+5}, 0x33333333
    v_mov_b32 v{vX+6}, 0xcccc
    v_mov_b32 v{vX+7}, 0xcccccccc
    """)
    for r in range(2):
        b = vTb + r*8
        isA = f"s[{56+r*4}:{57+r*4}]"; valid = f"s[{58+r*4}:{59+r*4}]"
        d = vD0 + 3*r
        a(f"""
        v_lshlrev_b32 v{b+4}, 4, v{b+1}
        v_sub_u32 v{b+5}, s64, v{b+4}
        v_sub_u32 v{b+6}, s65, v{b+4}
        v_cmp_gt_u32 vcc, s{sS}, v{b}
        s_andn2_b64 s[92:93], {valid}, {isA}
        s_or_b64 s[92:93], s[92:93], vcc
        v_cndmask_b32 v{b+5}, 0, v{b+5}, {isA}
        v_cndmask_b32 v{b+6}, 0, v{b+6}, s[92:93]
        v_cmp_lt_i32 s[94:95], 0, v{b+5}
        v_cmp_lt_i32 s[96:97], 1, v{b+5}
        v_cmp_lt_i32 s[98:99], 2, v{b+5}
        v_cmp_lt_i32 vcc, 3, v{b+5}
        v_cndmask_b32 v{d+1}, 0, v{vX+4}, s[94:95]
        v_cndmask_b32 v{d+1}, v{d+1}, v{vX+5}, s[96:97]
        v_cndmask_b32 v{d+2}, 0, v{vX+4}, s[98:99]
        v_cndmask_b32 v{d+2}, v{d+2}, v{vX+5}, vcc
        v_cmp_lt_i32 s[94:95], 0, v{b+6}
        v_cmp_lt_i32 s[96:97], 1, v{b+6}
        v_cmp_lt_i32 s[98:99], 2, v{b+6}
        v_cmp_lt_i32 vcc, 3, v{b+6}
        v_cndmask_b32 v{vX+2}, 0, v{vX+6}, s[94:95]
        v_cndmask_b32 v{vX+2}, v{vX+2}, v{vX+7}, s[96:97]
        v_cndmask_b32 v{vX+3}, 0, v{vX+6}, s[98:99]
        v_cndmask_b32 v{vX+3}, v{vX+3}, v{vX+7}, vcc
        v_or_b32 v{d+1}, v{d+1}, v{vX+2}
        v_or_b32 v{d+2}, v{d+2}, v{vX+3}
        s_waitcnt lgkmcnt({1-r})
        v_lshlrev_b32 v{b+3}, 16, v{b+3}
        v_cmp_ne_u32 vcc, 0, v{d+1}
        v_add_u32 v{b+3}, s46, v{b+3}
        v_mov_b32 v{vX}, {OOB}
        v_cndmask_b32 v{d}, v{vX}, v{b+3}, vcc
        """)
    a(f"""
    s_sub_u32 s3, s{sN}, s{sSl}
    s_add_u32 s3, s3, 31
    s_ashr_i32 s3, s3, 5
    s_max_i32 s3, s3, 1
    s_add_u32 s3, s3, 3
    s_lshr_b32 s{sIt}, s3, 2
    s_mov_b32 s{sIdx}, 0
    s_lshl_b32 s{sAccL}, s{sJ}, 30
    s_mov_b32 s{sAccS}, s{sAccL}
    """)
    def fetch_off():
        a(f"""
        v_readlane_b32 s{sOff}, v{vD0}, s{sIdx}
        s_add_u32 s3, s{sIdx}, 1
        v_readlane_b32 s{sOff+1}, v{vD0}, s3
        s_add_u32 s3, s{sIdx}, 2
        v_readlane_b32 s{sOff+2}, v{vD0}, s3
        s_add_u32 s3, s{sIdx}, 3
        v_readlane_b32 s{sOff+3}, v{vD0}, s3
        """)
    def fetch_masks():
        for e in range(4):
            a(f"v_readlane_b32 s{sMask+2*e}, v{vD0+1}, s{sIdx}")
            a(f"v_readlane_b32 s{sMask+2*e+1}, v{vD0+2}, s{sIdx}")
            a(f"s_add_u32 s{sIdx}, s{sIdx}, 1")
    def next_off(tag):
        a(f"""
        s_cmp_lg_u32 s{sIdx}, 64
        s_cbranch_scc1 L_noswap{tag}
        v_mov_b32 v{vD0}, v{vD0+3}
        v_mov_b32 v{vD0+1}, v{vD0+4}
        v_mov_b32 v{vD0+2}, v{vD0+5}
        s_mov_b32 s{sIdx}, 0
        L_noswap{tag}:
        """)
        fetch_off()
    fetch_off()
    stamp(2)
    a(f"s_cmp_eq_u32 s47, 1\ns_nop 3\ns_cbranch_scc0 L_burst")
    hist_jump = list(a.hist)
    for x in range(P0, 16): load(x)
    fetch_masks()
    a("s_branch L_burst_qk")
    hist_jump2 = list(a.hist)
    def QK(e):
        d = vS + 4*e
        a(f"v_mfma_f32_16x16x32_bf16 v[{d}:{d+3}], v[{kslot(e,0)}:{kslot(e,0)+3}], v[{vQ}:{vQ+3}], 0")
        a(f"v_mfma_f32_16x16x32_bf16 v[{d}:{d+3}], v[{kslot(e,1)}:{kslot(e,1)+3}], v[{vQ+4}:{vQ+7}], v[{d}:{d+3}]")
    def RED(e):
        d = vS + 4*e
        a(f"""
        v_cndmask_b32 v{d}, v{d}, v{d+1}, s[{sModd}:{sModd+1}]
        v_cndmask_b32 v{d+2}, v{d+2}, v{d+3}, s[{sModd}:{sModd+1}]
        v_cndmask_b32 v{d}, v{d}, v{d+2}, s[{sMhi}:{sMhi+1}]
        v_add_f32_dpp v{d+1}, v{d}, v{d} row_ror:4 row_mask:0xf bank_mask:0xf
        v_add_f32_dpp v{d}, v{d+1}, v{d+1} row_ror:8 row_mask:0xf bank_mask:0xf
        v_cndmask_b32 v{d}, v{vNeg}, v{d}, s[{sMask+2*e}:{sMask+2*e+1}]
        """)
    def SM(wave_max):
        T = [vS + 4*e for e in range(4)]
        a(f"""
        v_max3_f32 v{vM}, v{vM}, v{T[0]}, v{T[1]}
        v_max3_f32 v{vM}, v{vM}, v{T[2]}, v{T[3]}
        """)
        if wave_max:
            a(f"""
            v_mov_b32 v{vX}, v{vM}
            v_permlane32_swap_b32 v{vM}, v{vX}
            v_max_f32 v{vM}, v{vM}, v{vX}
            v_mov_b32 v{vX}, v{vM}
            v_permlane16_swap_b32 v{vM}, v{vX}
            v_max_f32 v{vM}, v{vM}, v{vX}
            """)
        a(f"""
        v_mul_f32 v{vX}, s{sC}, v{vM}
        v_sub_f32 v{vAl}, v{vMC}, v{vX}
        v_fma_f32 v{T[0]}, v{T[0]}, s{sC}, -v{vX}
        v_fma_f32 v{T[1]}, v{T[1]}, s{sC}, -v{vX}
        v_fma_f32 v{T[2]}, v{T[2]}, s{sC}, -v{vX}
        v_fma_f32 v{T[3]}, v{T[3]}, s{sC}, -v{vX}
        v_exp_f32 v{vAl}, v{vAl}
        v_exp_f32 v{T[0]}, v{T[0]}
        v_exp_f32 v{T[1]}, v{T[1]}
        v_exp_f32 v{T[2]}, v{T[2]}
        v_exp_f32 v{T[3]}, v{T[3]}
        v_mov_b32 v{vMC}, v{vX}
        v_mov_b32_dpp v{vAq}, v{vAl} quad_perm:[0,0,0,0] row_mask:0xf bank_mask:0xf
        v_mov_b32_dpp v{vAq+1}, v{vAl} quad_perm:[1,1,1,1] row_mask:0xf bank_mask:0xf
        v_mov_b32_dpp v{vAq+2}, v{vAl} quad_perm:[2,2,2,2] row_mask:0xf bank_mask:0xf
        v_mov_b32_dpp v{vAq+3}, v{vAl} quad_perm:[3,3,3,3] row_mask:0xf bank_mask:0xf
        v_add_f32 v{vX}, v{T[0]}, v{T[1]}
        v_add_f32 v{vX+1}, v{T[2]}, v{T[3]}
        v_cvt_pk_bf16_f32 v{vP}, v{T[0]}, v{T[1]}
        v_cvt_pk_bf16_f32 v{vP+1}, v{T[2]}, v{T[3]}
        v_add_f32 v{vX}, v{vX}, v{vX+1}
        v_fma_f32 v{vL}, v{vL}, v{vAl}, v{vX}
        """)
    def RS(t0, t1):
        for t in range(t0, t1):
            r = vA + 4*t
            a(f"v_pk_mul_f32 v[{r}:{r+1}], v[{r}:{r+1}], v[{vAq}:{vAq+1}]")
            a(f"v_pk_mul_f32 v[{r+2}:{r+3}], v[{r+2}:{r+3}], v[{vAq+2}:{vAq+3}]")
    def PV(h, d0, d1):
        def perm(dd):
            t = vT + 2*(dd & 3); rr = dd >> 1; sel = sSelHi if dd & 1 else sSelLo
            a(f"v_perm_b32 v{t}, v{vslot(h,1)+rr}, v{vslot(h,0)+rr}, s{sel}")
            a(f"v_perm_b32 v{t+1}, v{vslot(h,3)+rr}, v{vslot(h,2)+rr}, s{sel}")
        def mm(dd):
            t = vT + 2*(dd & 3); r = vA + 4*(8*h + dd)
            a(f"v_mfma_f32_4x4x4_16b_bf16 v[{r}:{r+3}], v[{vP}:{vP+1}], v[{t}:{t+1}], v[{r}:{r+3}]")
        perm(d0)
        for dd in range(d0, d1):
            if dd + 1 < d1: perm(dd + 1)
            mm(dd)
    def FB():
        G = int(round(gain * SP / 4 / 128 * 2**24)); B0 = int(round(bias * 128))
        back = sum(1 for y in range(XPL + 1, 16 + 4) if (y % 16) % SP == SP - 1)
        a(f"""
        s_cmp_eq_u32 s{sFb}, 0
        s_mov_b32 s{sFb}, 1
        s_cbranch_scc1 L_nofb
        v_add_u32 v{vSib}, v{vSib}, v{vSib+1}
        v_readfirstlane_b32 s3, v{vProg}
        v_add_u32_dpp v{vSib}, v{vSib}, v{vSib} row_ror:1 row_mask:0xf bank_mask:0xf
        s_sub_u32 s3, s3, {back}
        s_lshl_b32 s3, s3, 7
        v_add_u32_dpp v{vSib}, v{vSib}, v{vSib} row_ror:2 row_mask:0xf bank_mask:0xf
        s_sub_u32 s3, {B0}, s3
        v_add_u32_dpp v{vSib}, v{vSib}, v{vSib} row_ror:4 row_mask:0xf bank_mask:0xf
        v_add_u32_dpp v{vSib}, v{vSib}, v{vSib} row_ror:8 row_mask:0xf bank_mask:0xf
        v_readlane_b32 s39, v{vSib}, 0
        v_readlane_b32 s44, v{vSib}, 16
        v_readlane_b32 s45, v{vSib}, 32
        v_readlane_b32 s47, v{vSib}, 48
        s_add_u32 s3, s3, s39
        s_add_u32 s44, s44, s45
        s_add_u32 s3, s3, s47
        s_add_u32 s3, s3, s44
        s_max_i32 s3, s3, -1024
        s_min_i32 s3, s3, 1024
        """)
        if dbg:
            a(f"s_add_u32 s30, s30, s3\ns_mul_i32 s39, s3, s3\ns_add_u32 s32, s32, s39")
        a(f"""
        s_mul_i32 s3, s3, {G}
        s_add_u32 s3, s3, s{sBase}
        s_min_i32 s3, s3, {int(umax * 2**24)}
        s_max_i32 s3, s3, {-int(umin * 2**24)}
        s_max_i32 s{sIncL}, s3, 0
        s_sub_u32 s3, 0, s3
        s_max_i32 s{sIncS}, s3, 0
        s_lshl_b32 s{sIncL}, s{sIncL}, 8
        s_lshl_b32 s{sIncS}, s{sIncS}, 8
        L_nofb:
        """)
    def flag_store():
        a(f"""
        s_lshl_b32 s3, s{sHead}, 5
        s_add_u32 s3, s3, s{sSl}
        s_lshl_b32 s3, s3, 7
        v_lshlrev_b32 v{vTb}, 4, v1
        v_add_u32 v{vTb}, s3, v{vTb}
        v_mov_b32 v{vTb+4}, s{sTag}
        v_mov_b32 v{vTb+5}, s{sTag}
        v_mov_b32 v{vTb+6}, s{sTag}
        v_mov_b32 v{vTb+7}, s{sTag}
        s_cmp_eq_u32 s3, 0
        s_movk_i32 s3, 0xff
        s_cselect_b32 s3, s3, 0
        s_or_b32 exec_lo, s3, 0xff00
        s_mov_b32 exec_hi, 0
        global_store_dwordx4 v{vTb}, v[{vTb+4}:{vTb+7}], s[18:19] sc1
        s_mov_b64 exec, -1
        s_mov_b32 s{sSt}, 0
        """)
    def TAGSM():
        a(f"""
        s_cmp_eq_u32 s{sSt}, 0
        s_cbranch_scc1 L_st_done
        s_cmp_eq_u32 s{sSt}, 2
        s_cbranch_scc1 L_st_load
        v_readfirstlane_b32 s{sTag}, v{vNo}
        s_cmp_eq_u32 s{sTag}, 0
        s_cbranch_scc1 L_st_load
        """)
        flag_store()
        a(f"""
        s_branch L_st_done
        L_st_load:
        v_mov_b32 v{vTb}, 0
        global_load_dword v{vNo}, v{vTb}, s[16:17] sc1
        s_mov_b32 s{sSt}, 1
        L_st_done:
        """)
    sched = {0: [fetch_masks], 1: [lambda: PV(0, 0, 4)], 2: [lambda: PV(0, 4, 8)], 3: [lambda: RS(8, 16)], 4: [FB],
             5: [lambda: PV(1, 0, 4)], 6: [lambda: PV(1, 4, 8)], 7: [lambda: QK(0), TAGSM], 8: [lambda: RED(0)], 9: [lambda: QK(1)],
             10: [lambda: RED(1)], 11: [lambda: QK(2)], 12: [lambda: RED(2)], 13: [lambda: QK(3), lambda: RED(3)],
             14: [lambda: SM(False)], 15: [lambda: RS(0, 8)]}
    assert (XPL - 16) <= 4 - R
    a.raw(".p2align 6")
    a("L_loop:")
    for x in range(16):
        a(f"""
        s_add_u32 s{sAccL}, s{sAccL}, s{sIncL}
        s_cbranch_scc1 L_lax{x}
        s_add_u32 s{sAccS}, s{sAccS}, s{sIncS}
        s_cbranch_scc0 L_nrm{x}
        s_waitcnt vmcnt({cnt(x-(R-2), x)})
        L_nrm{x}:
        s_waitcnt vmcnt({cnt(x-(R-1), x)})
        L_lax{x}:
        s_waitcnt vmcnt({cnt(x-R, x)})
        """)
        load(x)
        if x == 15: next_off(0)
        for t in sched[x]: t()
    if trace:
        for k, i in zip(trace, (1, 2, 4, 5)):
            a(f"s_cmp_lg_u32 s{sIt}, {k}\ns_cbranch_scc1 L_tr{i}\ns_memrealtime s[{STR[i]}:{STR[i]+1}]\nL_tr{i}:")
    a(f"s_sub_u32 s{sIt}, s{sIt}, 1\ns_cmp_gt_u32 s{sIt}, {B}\ns_cbranch_scc1 L_loop")
    a.check_backedge("L_loop")
    a("L_burst:")
    for x in range(8): load(x)
    fetch_masks()
    RS(8, 16)
    a(f"s_waitcnt vmcnt({cnt(11-16, 8)})")
    PV(0, 0, 8)
    for x in range(8, 12): load(x)
    a(f"s_waitcnt vmcnt({cnt(15-16, 12)})")
    PV(1, 0, 8)
    for x in range(12, 16): load(x)
    a("L_burst_qk:")
    a(f"""
    s_lshl_b32 s3, s{sIt}, 2
    s_add_u32 s3, s3, s{sJ}
    s_cmp_lg_u32 s3, 4
    s_cbranch_scc1 L_nopre
    s_cmp_lt_u32 s{sSl}, {32-C}
    s_cbranch_scc1 L_nopre
    global_load_dword v{vNo+1}, v{vFl}, s[18:19] offset:128 sc1
    L_nopre:
    """)
    for e in range(4):
        a(f"s_waitcnt vmcnt({cnt(2*e+1, 16)})")
        QK(e)
        if e: RED(e-1)
    RED(3); SM(True); RS(0, 8)
    a(f"s_sub_u32 s{sIt}, s{sIt}, 1\ns_cmp_eq_u32 s{sIt}, 0\ns_cbranch_scc1 L_drain")
    hist_d = list(a.hist)
    next_off(1)
    a(f"s_cmp_gt_u32 s{sIt}, {B}\ns_nop 1\ns_cbranch_scc1 L_loop")
    a.check_backedge("L_loop")
    a("s_branch L_burst")
    a.check_backedge("L_burst")
    a.check_jump("L_burst", hist_jump)
    a.check_jump("L_burst_qk", hist_jump2)
    a("L_drain:")
    a.hist = hist_d
    x0, x1 = vX, vX+1
    vCo, vCm, vOut = vTb+8, vTb+12, vTb+13
    RS(8, 16)
    lgC = 6 if pbf16 else 7
    a(f"""
    v_mov_b32 v{x1}, v{vL}
    v_lshrrev_b32 v{vX+2}, 4, v1
    v_and_b32 v{vX+3}, 15, v1
    v_permlane32_swap_b32 v{vL}, v{x1}
    v_lshlrev_b32 v{vX+2}, 3, v{vX+2}
    v_add_f32 v{vL}, v{vL}, v{x1}
    v_lshl_add_u32 v{vX+2}, v{vX+3}, 5, v{vX+2}
    v_mov_b32 v{x1}, v{vL}
    s_lshl_b32 s3, s{sJ}, 12
    v_add_u32 v{vX+2}, s3, v{vX+2}
    v_permlane16_swap_b32 v{vL}, v{x1}
    s_lshl_b32 s3, s{sJ}, 2
    v_add_f32 v{vL}, v{vL}, v{x1}
    v_lshlrev_b32 v{x1}, 4, v1
    v_add_u32 v{vX+3}, s3, v{x1}
    s_mov_b64 exec, 0xf
    ds_write_b32 v{vX+3}, v{vMC} offset:{LDS_M}
    ds_write_b32 v{vX+3}, v{vL} offset:{LDS_L}
    s_mov_b64 exec, -1
    s_lshl_b32 s3, s{sJ}, 4
    v_mov_b32 v{vX+4}, s3
    s_lshl_b32 s3, s{sJ}, 10
    v_add_u32 v{vX+5}, s3, v{x1}
    s_and_b32 s3, s{sSl}, 7
    s_lshl_b32 s3, s3, 2
    s_add_u32 s3, s3, s{sJ}
    s_lshr_b32 s44, s3, 3
    s_and_b32 s45, s3, 7
    s_lshl_b32 s39, s{sHead}, 2
    s_add_u32 s39, s39, s44
    v_lshrrev_b32 v{vX+6}, 3, v1
    v_and_b32 v{vX+7}, 7, v1
    v_lshlrev_b32 v{vCo}, {lgRB}, v{vX+6}
    v_lshl_add_u32 v{vCo}, v{vX+7}, {lgC-3}, v{vCo}
    s_lshl_b32 s3, s39, {lgRB+5}
    s_lshl_b32 s46, s45, {lgC}
    s_add_u32 s3, s3, s46
    s_add_u32 s3, s3, {DA_OFF}
    v_add_u32 v{vCo}, s3, v{vCo}
    s_lshl_b32 s3, s39, 12
    s_add_u32 s3, s3, {ML_OFF}
    v_lshlrev_b32 v{vCm}, 7, v{vX+6}
    v_add_u32 v{vCm}, s3, v{vCm}
    v_add_u32 v{vCo+1}, {8*RB}, v{vCo}
    v_add_u32 v{vCo+2}, {16*RB}, v{vCo}
    v_add_u32 v{vCo+3}, {24*RB}, v{vCo}
    s_lshr_b32 s3, s44, 1
    s_lshl_b32 s3, s3, 13
    s_lshl_b32 s46, s{sHead}, 10
    s_add_u32 s3, s3, s46
    s_and_b32 s46, s44, 1
    s_lshl_b32 s46, s46, 9
    s_add_u32 s3, s3, s46
    s_lshl_b32 s46, s45, 6
    s_add_u32 s3, s3, s46
    v_lshrrev_b32 v{vOut}, 4, v1
    v_lshlrev_b32 v{vOut}, 1, v{vOut}
    v_lshl_add_u32 v{vOut}, v{vX+7}, 3, v{vOut}
    v_add_u32 v{vOut}, s3, v{vOut}
    s_mov_b64 s[56:57], -1
    s_mov_b64 s[58:59], -1
    s_mov_b64 s[60:61], -1
    s_mov_b64 s[62:63], -1
    s_waitcnt vmcnt({cnt(11, 16)})
    """)
    vW = vK
    def REDUCE(h):
        X = lambda dd, q: vA + 4*(8*h + dd) + q
        for dd in range(4):
            for q in range(4): a(f"v_permlane32_swap_b32 v{X(dd,q)}, v{X(dd+4,q)}")
        for dd in range(4):
            for q in (0, 2): a(f"v_pk_add_f32 v[{X(dd,q)}:{X(dd,q)+1}], v[{X(dd,q)}:{X(dd,q)+1}], v[{X(dd+4,q)}:{X(dd+4,q)+1}]")
        for dd in range(2):
            for q in range(4): a(f"v_permlane16_swap_b32 v{X(dd,q)}, v{X(dd+2,q)}")
        for q in range(4):
            w = vW + 8*h + 2*q
            a(f"v_add_f32 v{w}, v{X(0,q)}, v{X(2,q)}\nv_add_f32 v{w+1}, v{X(1,q)}, v{X(3,q)}")
            a(f"ds_write_b64 v{vX+2}, v[{w}:{w+1}] offset:{LDS_O + q*1024 + h*512}")
    PV(0, 0, 8)
    REDUCE(0)
    a("s_waitcnt vmcnt(0)")
    PV(1, 0, 8)
    stamp(3)
    REDUCE(1)
    a(f"""
    s_cmp_lg_u32 s{sJ}, 0
    s_cbranch_scc1 L_chk_ok
    s_cmp_eq_u32 s{sSt}, 0
    s_cbranch_scc1 L_have_tag
    s_mov_b32 s52, s54
    s_mov_b32 s53, 0
    s_waitcnt lgkmcnt(0)
    s_atomic_cmpswap s[52:53], s[16:17], 0x0 glc
    s_waitcnt lgkmcnt(0)
    s_cmp_eq_u32 s52, 0
    s_cselect_b32 s{sTag}, s54, s52
    """)
    flag_store()
    a(f"""
    L_have_tag:
    s_cmp_lt_u32 s{sSl}, {32-C}
    s_cbranch_scc1 L_chk_ok
    L_chk:
    v_cmp_ne_u32 vcc, s{sTag}, v{vNo+1}
    s_cbranch_vccz L_chk_ok
    global_load_dword v{vNo+1}, v{vFl}, s[18:19] offset:128 sc1
    s_waitcnt vmcnt(0)
    s_branch L_chk
    L_chk_ok:
    s_waitcnt lgkmcnt(0)
    """)
    stamp(4)
    a(f"""
    s_barrier
    ds_read_b128 v[{vS}:{vS+3}], v{vX+4} offset:{LDS_M}
    ds_read_b128 v[{vS+4}:{vS+7}], v{vX+4} offset:{LDS_L}
    """)
    for w in range(4):
        a(f"ds_read_b128 v[{vV+4*w}:{vV+4*w+3}], v{vX+5} offset:{LDS_O + w*4096}")
    if stamps: a("s_waitcnt lgkmcnt(0)")
    a(f"""
    s_waitcnt lgkmcnt(4)
    v_max_f32 v{vM}, v{vS}, v{vS+1}
    v_max3_f32 v{vM}, v{vM}, v{vS+2}, v{vS+3}
    """)
    for w in range(4): a(f"v_sub_f32 v{vS+w}, v{vS+w}, v{vM}")
    for w in range(4): a(f"v_exp_f32 v{vS+w}, v{vS+w}")
    a(f"s_waitcnt lgkmcnt(3)")
    for t in (0, 2): a(f"v_pk_mul_f32 v[{vW+t}:{vW+t+1}], v[{vV+t}:{vV+t+1}], v[{vS}:{vS+1}] op_sel_hi:[1,0]")
    for w in range(1, 4):
        a(f"s_waitcnt lgkmcnt({3-w})")
        for t in range(4): a(f"v_fmac_f32 v{vW+t}, v{vS+w}, v{vV+4*w+t}")
    if pbf16:
        a(f"""
        v_cvt_pk_bf16_f32 v{vW}, v{vW}, v{vW+1}
        v_cvt_pk_bf16_f32 v{vW+1}, v{vW+2}, v{vW+3}
        v_min_u32 v{vW}, -2, v{vW}
        v_min_u32 v{vW+1}, -2, v{vW+1}
        global_store_dwordx2 v{vPo}, v[{vW}:{vW+1}], s[18:19] sc1
        """)
    else:
        for t in range(4): a(f"v_min_u32 v{vW+t}, -2, v{vW+t}")
        a(f"global_store_dwordx4 v{vPo}, v[{vW}:{vW+3}], s[18:19] sc1")
    a(f"v_mul_f32 v{vM+1}, v{vS}, v{vS+4}")
    for w in range(1, 4): a(f"v_fmac_f32 v{vM+1}, v{vS+w}, v{vS+4+w}")
    a(f"""
    v_min_u32 v{vM}, -2, v{vM}
    v_min_u32 v{vM+1}, -2, v{vM+1}
    v_mov_b32 v{vM+2}, v{vM}
    v_mov_b32 v{vM+3}, v{vM+1}
    s_mov_b64 exec, 0xff
    global_store_dwordx4 v{vPm}, v[{vM}:{vM+3}], s[18:19] sc1
    """)
    stamp(5)
    a(f"""
    s_cmp_lt_u32 s{sSl}, {32-C}
    s_cbranch_scc1 L_fin
    L_poll:
    """)
    vO, vML = vV, vV+16
    a.lines.pop()
    def poll_round():
        for i in range(4):
            a(f"s_mov_b64 exec, s[{56+2*i}:{57+2*i}]")
            if PD == 1: a(f"s_cbranch_execz L_skip{i}")
            if pbf16: a(f"global_load_dwordx2 v[{vO+4*i}:{vO+4*i+1}], v{vCo+i}, s[18:19] sc1")
            else: a(f"global_load_dwordx4 v[{vO+4*i}:{vO+4*i+3}], v{vCo+i}, s[18:19] sc1")
            a(f"global_load_dwordx2 v[{vML+2*i}:{vML+2*i+1}], v{vCm}, s[18:19] offset:{1024*i} sc1")
            if PD == 1: a(f"L_skip{i}:")
    for k in range(PD - 1):
        poll_round()
        a(f"s_sleep {psl}")
    a("L_poll:")
    poll_round()
    a(f"s_mov_b64 exec, -1\ns_waitcnt vmcnt({8*(PD-1)})")
    for i in range(4):
        if pbf16:
            a(f"""
            v_max3_u32 v{vX+3}, v{vO+4*i}, v{vO+4*i+1}, v{vML+2*i}
            v_max_u32 v{vX+3}, v{vX+3}, v{vML+2*i+1}
            """)
        else:
            a(f"""
            v_max3_u32 v{vX+3}, v{vO+4*i}, v{vO+4*i+1}, v{vO+4*i+2}
            v_max3_u32 v{vX+4}, v{vO+4*i+3}, v{vML+2*i}, v{vML+2*i+1}
            v_max_u32 v{vX+3}, v{vX+3}, v{vX+4}
            """)
        a(f"v_cmp_eq_u32 s[{56+2*i}:{57+2*i}], -1, v{vX+3}")
    a(f"""
    s_or_b64 s[64:65], s[56:57], s[58:59]
    s_or_b64 s[66:67], s[60:61], s[62:63]
    s_or_b64 s[64:65], s[64:65], s[66:67]
    s_cbranch_scc1 L_poll
    """)
    a.check_backedge("L_poll")
    stamp(6)
    m = vX+3; t = vX+4; vF = vS; vR = vS+4; vU = vA
    a(f"""
    v_max_f32 v{m}, v{vML}, v{vML+2}
    v_max3_f32 v{m}, v{m}, v{vML+4}, v{vML+6}
    """)
    if pbf16:
        for i in range(4):
            o = vO + 4*i; u = vU + 4*i
            a(f"""
            v_and_b32 v{u+3}, 0xffff0000, v{o+1}
            v_lshlrev_b32 v{u+2}, 16, v{o+1}
            v_and_b32 v{u+1}, 0xffff0000, v{o}
            v_lshlrev_b32 v{u}, 16, v{o}
            """)
    src = vU if pbf16 else vO
    a(f"""
    v_max_f32_dpp v{m}, v{m}, v{m} row_ror:8 row_mask:0xf bank_mask:0xf
    v_mov_b32 v{t}, v{m}
    v_permlane16_swap_b32 v{m}, v{t}
    v_max_f32 v{m}, v{m}, v{t}
    v_mov_b32 v{t}, v{m}
    v_permlane32_swap_b32 v{m}, v{t}
    v_max_f32 v{m}, v{m}, v{t}
    """)
    for i in range(4): a(f"v_sub_f32 v{vF+i}, v{vML+2*i}, v{m}")
    for i in range(4): a(f"v_exp_f32 v{vF+i}, v{vF+i}")
    a(f"v_mul_f32 v{m}, v{vF}, v{vML+1}")
    for k in (0, 2): a(f"v_pk_mul_f32 v[{vR+k}:{vR+k+1}], v[{src+k}:{src+k+1}], v[{vF}:{vF+1}] op_sel_hi:[1,0]")
    for i in range(1, 4):
        a(f"v_fmac_f32 v{m}, v{vF+i}, v{vML+2*i+1}")
        for k in range(4): a(f"v_fmac_f32 v{vR+k}, v{vF+i}, v{src+4*i+k}")
    a(f"""
    v_mov_b32 v{t}, v{m}
    v_permlane32_swap_b32 v{vR}, v{vR+2}
    v_permlane32_swap_b32 v{vR+1}, v{vR+3}
    v_permlane32_swap_b32 v{m}, v{t}
    v_add_f32 v{vR}, v{vR}, v{vR+2}
    v_add_f32 v{vR+1}, v{vR+1}, v{vR+3}
    v_add_f32 v{m}, v{m}, v{t}
    v_mov_b32 v{t}, v{m}
    v_permlane16_swap_b32 v{vR}, v{vR+1}
    v_permlane16_swap_b32 v{m}, v{t}
    v_add_f32 v{vR}, v{vR}, v{vR+1}
    v_add_f32 v{m}, v{m}, v{t}
    v_add_f32_dpp v{vR}, v{vR}, v{vR} row_ror:8 row_mask:0xf bank_mask:0xf
    v_add_f32_dpp v{m}, v{m}, v{m} row_ror:8 row_mask:0xf bank_mask:0xf
    v_rcp_f32 v{m}, v{m}
    s_mov_b32 exec_lo, 0x00ff00ff
    s_mov_b32 exec_hi, 0x00ff00ff
    v_mul_f32 v{vR}, v{vR}, v{m}
    v_cvt_pk_bf16_f32 v{vR}, v{vR}, v{vR}
    global_store_short v{vOut}, v{vR}, s[14:15]
    L_fin:
    """)
    if stamps and PD > 1: a("s_waitcnt vmcnt(0)")
    if stamps:
        a(f"""
        s_mov_b64 exec, -1
        s_cmp_lt_u32 s{sSl}, {32-C}
        s_cbranch_scc0 L_st1
        s_memrealtime s[100:101]
        L_st1:
        s_getreg_b32 s98, hwreg(HW_REG_XCC_ID)
        s_getreg_b32 s99, hwreg(HW_REG_HW_ID)
        s_lshl_b32 s3, s2, 2
        s_add_u32 s3, s3, s{sJ}
        s_lshl_b32 s3, s3, 6
        s_add_u32 s3, s3, 0x20000000
        v_mov_b32 v{x0}, s3
        s_waitcnt lgkmcnt(0)
        """)
        for i in range(7):
            a(f"v_mov_b32 v{vV+2*i}, s{STR[i]}\nv_mov_b32 v{vV+2*i+1}, s{STR[i]+1}")
        a(f"v_mov_b32 v{vV+14}, s98\nv_mov_b32 v{vV+15}, s99\ns_mov_b64 exec, 1")
        for i in range(4):
            a(f"global_store_dwordx4 v{x0}, v[{vV+4*i}:{vV+4*i+3}], s[18:19] offset:{16*i}")
    a("L_end:\ns_endpgm")
    if diag:
        from diag import diag_kernel
        diag_kernel(a, 1024, **diag)
    def kd(name, nv, ns):
        a.raw(f""".amdhsa_kernel {name}
  .amdhsa_next_free_vgpr {nv}
  .amdhsa_next_free_sgpr {ns}
  .amdhsa_accum_offset {min(256,(nv+3)//4*4)}
  .amdhsa_group_segment_fixed_size 0
  .amdhsa_kernarg_size 64
  .amdhsa_user_sgpr_count 2
  .amdhsa_user_sgpr_kernarg_segment_ptr 1
  .amdhsa_system_sgpr_workgroup_id_x 1
  .amdhsa_float_denorm_mode_32 3
.end_amdhsa_kernel""")
    a.raw('.section .rodata,"a"\n.p2align 6')
    kd(KNAME, nvg, 102)
    if diag:
        a.raw(".p2align 6")
        kd("diag_kernel", 64, 32)
    return a.text()

if __name__ == "__main__":
    out = sys.argv[1]
    kw = eval("dict(" + (sys.argv[2] if len(sys.argv) > 2 else "") + ")")
    open(out, "w").write(gen(**kw))
```

```python
import sys, math, struct
from asmlib import Asm
KNAME = "standalone__paged_block_table_kv_radixattention__decode_kernel"
HDR = open("standalone__paged_block_table_kv_radixattention__decode.s.ref").read().split("; Override launch")[0]
C_SCALE = 0x3db8aa3b

vKo, vVo = 2, 3
vQ = 4
vD0 = 12
vM, vMC, vL, vAl = 18, 19, 20, 21
vAq = 22
vP = 26
vS = 28
vT = 44
vK = 52
vV = 84
vA = 116
vNeg = 180
vPo, vPm, vFl = 181, 182, 183
vX = 184
vTb = 192
vNo = 208
vPrA, vProg, vPrL, vSib = 210, 211, 212, 214
NVG = 216
sJ, sHead, sSl = 36, 37, 38
sBase = 43
sOff = 48
sIncL = 55
sMask = 56
sAccS, sAccL, sIncS, sTag = 68, 69, 70, 71
sIdx, sIt = 72, 73
sModd, sMhi = 74, 76
sSelLo, sSelHi, sC = 78, 79, 80
sN, sS, sNb0, sNb1, sC0, sC1 = 81, 82, 83, 84, 85, 86
sSt, sFb = 87, 42
OOB = 0xF0000000
PR_OFF, ML_OFF, DA_OFF = 0x9000, 0x10000, 0x40000
LDS_S, LDS_M, LDS_L, LDS_O = 16384, 16448, 16512, 20480
R = 6

def kslot(e, h): return vK + (2*e + h)*4
def vslot(h, e): return vV + (4*h + e)*4

def gen(pol="nt", stamps=False, lds=98304, diag=None, P0=8, B=1, blk=True, trace=None, nvg=NVG,
        xcc=(0.95, 0, 0.95, 0.05, 1.2, 0.1, 1.35, 0.1), base=0.8, sens=8.0,
        gain=0.25, bias=-0.2, umax=0.75, umin=0.75, SP=8, XPL=13, dbg=False, pbf16=False, remap=False, PD=1, psl=4, opol='', prpol='', ppol='sc1', fb2=False, bias2=None, G=1, cu=0.08, he=0.45, w0=0.15, xclear=0, phys=True, psleep=0, mlfirst=True, mlk=8, phi=0.0):
    a = Asm()
    C = 8
    STR = [28, 30, 32, 34, 88, 90, 100]
    def stamp(i):
        if trace and i in (1, 2, 4, 5): return
        if dbg and i in (1, 2):
            a(f"s_mov_b64 s[{STR[i]}:{STR[i]+1}], 0"); return
        if stamps: a(f"s_memrealtime s[{STR[i]}:{STR[i]+1}]")
    def load(x):
        if x < 8:
            e, h = x >> 1, x & 1
            r = kslot(e, h)
            a(f"buffer_load_dwordx4 v[{r}:{r+3}], v{vKo}, s[20:23], s{sOff+e} offen offset:{h*256} {pol}")
        else:
            h, e = (x - 8) >> 2, (x - 8) & 3
            r = vslot(h, e)
            a(f"buffer_load_dwordx4 v[{r}:{r+3}], v{vVo}, s[24:27], s{sOff+e} offen offset:{h*256} {pol}")
        if x % SP == SP - 1:
            a(f"""
            v_add_u32 v{vProg}, 1, v{vProg}
            s_mov_b64 exec, 1
            global_store_{'short' if phys else 'dword'} v{vPrA}, v{vProg}, s[18:19] {prpol}
            s_mov_b64 exec, -1
            """)
        if x == XPL or (fb2 and x == XPL - 8):
            a(f"global_load_dwordx2 v[{vSib}:{vSib+1}], v{vPrL}, s[18:19] nt")
    def extra(y):
        y %= 16
        return (1 if y % SP == SP - 1 else 0) + (1 if (y == XPL or (fb2 and y == XPL - 8)) else 0)
    def cnt(target, now):
        return sum((1 if y > target else 0) + extra(y) for y in range(target, now))

    a.raw(HDR.rstrip("\n"))
    if diag:
        a.raw(f"; @launch kernel={KNAME} grid=(256,1,1) block=(256,1,1) lds={lds}")
        a.raw("; @launch kernel=diag_kernel grid=(1,1,1) block=(64,1,1) lds=0")
    else:
        a.raw(f"; @launch grid=(256,1,1) block=(256,1,1) lds={lds}")
    a.raw('.amdgcn_target "amdgcn-amd-amdhsa--gfx950"\n.text')
    a.raw(f".globl {KNAME}\n.p2align 8\n.type {KNAME},@function\n{KNAME}:")
    stamp(0)
    a(f"""
    s_load_dwordx16 s[4:19], s[0:1], 0
    s_cmp_ge_u32 s2, 256
    s_cbranch_scc1 L_end
    v_lshrrev_b32 v{vX}, 6, v0
    v_and_b32 v1, 63, v0
    s_lshr_b32 s{sHead}, s2, 3
    v_readfirstlane_b32 s{sJ}, v{vX}
    s_and_b32 s{sHead}, s{sHead}, 7
    """)
    if remap:
        a(f"""
        s_bfe_u32 s{sSl}, s2, 0x20001
        s_lshr_b32 s3, s2, 6
        s_lshl_b32 s3, s3, 2
        s_add_u32 s{sSl}, s{sSl}, s3
        s_andn2_b32 s3, 1, s2
        s_lshl_b32 s3, s3, 4
        s_add_u32 s{sSl}, s{sSl}, s3
        """)
    else:
        a(f"""
        s_and_b32 s{sSl}, s2, 7
        s_lshr_b32 s3, s2, 6
        s_lshl_b32 s3, s3, 3
        s_add_u32 s{sSl}, s{sSl}, s3
        """)
    a(f"""
    s_lshl_b32 s39, s{sHead}, 9
    v_lshrrev_b32 v{vX}, 4, v1
    v_bfe_u32 v{vX+1}, v1, 2, 2
    v_and_b32 v{vX+2}, 3, v1
    v_lshlrev_b32 v{vX+3}, 6, v{vX}
    v_lshl_add_u32 v{vKo}, v{vX+1}, 12, v{vX+3}
    v_lshl_add_u32 v{vKo}, v{vX+2}, 4, v{vKo}
    v_add_u32 v{vKo}, s39, v{vKo}
    v_and_b32 v{vX+4}, 15, v1
    v_lshlrev_b32 v{vVo}, 12, v{vX}
    v_lshl_add_u32 v{vVo}, v{vX+4}, 4, v{vVo}
    v_add_u32 v{vVo}, s39, v{vVo}
    v_lshl_add_u32 v{vX+5}, v{vX+1}, 4, v{vX+3}
    v_lshrrev_b32 v{vX+6}, 1, v{vX+2}
    v_lshl_add_u32 v{vX+5}, v{vX+6}, 13, v{vX+5}
    v_and_b32 v{vX+6}, 1, v1
    v_lshl_add_u32 v{vX+5}, v{vX+6}, 9, v{vX+5}
    s_lshl_b32 s39, s39, 1
    v_add_u32 v{vX+5}, s39, v{vX+5}
    v_lshlrev_b32 v{vX+6}, 5, v0
    v_add_u32 v{vX+7}, 0x2000, v{vX+6}
    s_lshl_b32 s3, s{sSl}, {4 if blk else 2}
    s_mov_b32 s22, 201326592
    s_mov_b32 s23, 0x20000
    s_mov_b32 s26, 201326592
    s_mov_b32 s27, 0x20000
    s_waitcnt lgkmcnt(0)
    s_load_dwordx2 s[40:41], s[12:13], 0
    s_add_u32 s44, s10, s3
    s_addc_u32 s45, s11, 0
    """)
    if blk:
        a(f"s_load_dwordx4 s[{sOff}:{sOff+3}], s[44:45], 0")
    else:
        for e in range(4): a(f"s_load_dword s{sOff+e}, s[44:45], {128*e}")
    RB = 512 if pbf16 else 1024
    lgRB = 9 if pbf16 else 10
    a(f"""
    s_load_dword s53, s[18:19], 0
    global_load_dwordx4 v[{vTb}:{vTb+3}], v{vX+6}, s[10:11]
    global_load_dwordx4 v[{vTb+4}:{vTb+7}], v{vX+6}, s[10:11] offset:16
    global_load_dwordx4 v[{vTb+8}:{vTb+11}], v{vX+7}, s[10:11]
    global_load_dwordx4 v[{vTb+12}:{vTb+15}], v{vX+7}, s[10:11] offset:16
    global_load_dwordx4 v[{vQ}:{vQ+3}], v{vX+5}, s[4:5]
    global_load_dwordx4 v[{vQ+4}:{vQ+7}], v{vX+5}, s[4:5] offset:256
    s_mov_b32 s20, s6
    s_and_b32 s21, s7, 0xffff
    s_mov_b32 s24, s8
    s_and_b32 s25, s9, 0xffff
    s_lshl_b32 s3, s{sHead}, 2
    s_add_u32 s3, s3, s{sJ}
    s_lshl_b32 s3, s3, 5
    s_add_u32 s3, s3, s{sSl}
    s_lshl_b32 s39, s3, {lgRB}
    s_add_u32 s39, s39, {DA_OFF}
    v_lshlrev_b32 v{vPo}, {3 if pbf16 else 4}, v1
    v_add_u32 v{vPo}, s39, v{vPo}
    s_lshl_b32 s39, s3, 7
    s_add_u32 s39, s39, {ML_OFF}
    v_lshlrev_b32 v{vPm}, 4, v1
    v_add_u32 v{vPm}, s39, v{vPm}
    s_cmp_lg_u32 s{sJ}, 0
    s_cbranch_scc1 L_noclear
    v_mov_b64 v[{vS}:{vS+1}], -1
    v_mov_b64 v[{vS+2}:{vS+3}], -1
    v_add_u32 v{vS+4}, {32*RB}, v{vPo}
    v_add_u32 v{vS+5}, {64*RB}, v{vPo}
    v_add_u32 v{vS+6}, {96*RB}, v{vPo}
    v_lshrrev_b32 v{vS+7}, 3, v1
    v_mul_u32_u24 v{vS+7}, {4096-128}, v{vS+7}
    v_add_u32 v{vS+7}, v{vS+7}, v{vPm}
    """)
    for r in (vPo, vS+4, vS+5, vS+6):
        if pbf16: a(f"global_store_dwordx2 v{r}, v[{vS}:{vS+1}], s[18:19] sc1")
        else: a(f"global_store_dwordx4 v{r}, v[{vS}:{vS+3}], s[18:19] sc1")
    for k in range(xclear):
        for r in (vPo, vS+4, vS+5, vS+6):
            a(f"v_add_u32 v{vS+8}, {0x200000*(k+1)}, v{r}\nglobal_store_dwordx4 v{vS+8}, v[{vS}:{vS+3}], s[18:19] sc1")
    a(f"""
    s_mov_b32 exec_hi, 0
    global_store_dwordx4 v{vS+7}, v[{vS}:{vS+3}], s[18:19] sc1
    s_mov_b64 exec, -1
    L_noclear:
    s_lshl_b32 s46, s{sJ}, 14
    """)
    if phys:
        a(f"""
        s_getreg_b32 s3, hwreg(HW_REG_XCC_ID, 0, 3)
        s_lshl_b32 s3, s3, 9
        s_add_u32 s3, s3, {PR_OFF}
        v_lshlrev_b32 v{vPrL}, 3, v1
        v_add_u32 v{vPrL}, s3, v{vPrL}
        s_getreg_b32 s39, hwreg(HW_REG_HW_ID, 13, 2)
        s_lshl_b32 s39, s39, 7
        s_add_u32 s3, s3, s39
        s_getreg_b32 s39, hwreg(HW_REG_HW_ID, 8, 4)
        s_lshl_b32 s39, s39, 3
        s_add_u32 s3, s3, s39
        s_lshl_b32 s39, s{sJ}, 1
        s_add_u32 s3, s3, s39
        v_mov_b32 v{vPrA}, s3
        v_mov_b32 v{vProg}, 0x5a00
        """)
    else:
        a(f"""
        s_and_b32 s3, s2, 7
        s_lshl_b32 s3, s3, 9
        s_add_u32 s3, s3, {PR_OFF}
        v_lshlrev_b32 v{vPrL}, 3, v1
        v_add_u32 v{vPrL}, s3, v{vPrL}
        s_lshr_b32 s39, s2, 3
        s_lshl_b32 s39, s39, 2
        s_add_u32 s39, s39, s{sJ}
        s_lshl_b32 s39, s39, 2
        s_add_u32 s3, s3, s39
        v_mov_b32 v{vPrA}, s3
        v_mov_b32 v{vProg}, 0
        """)
    a(f"""
    s_waitcnt lgkmcnt(0)
    """)
    for e in range(4):
        a(f"s_lshl_b32 s{sOff+e}, s{sOff+e}, 16\ns_add_u32 s{sOff+e}, s{sOff+e}, s46")
    a(f"""
    s_cmp_le_i32 s40, 0
    s_cselect_b32 s{sC0}, 0x8000, s40
    s_cmp_gt_u32 s{sC0}, 2047
    s_cselect_b32 s47, 1, 0
    s_cbranch_scc0 L_noearly
    """)
    for x in range(P0): load(x)
    YOUNG = cnt(-1, P0) - extra(-1)
    a("s_branch L_early_done\nL_noearly:")
    for i in range(0, 32, 2): a(f"v_mov_b64 v[{vV+i}:{vV+i+1}], 0")
    a("s_waitcnt vmcnt(0)\nL_early_done:")
    U = lambda lag: int(round(lag / sens * 2**24))
    a(f"""
    s_add_u32 s52, s53, 1
    s_max_u32 s52, s52, 1
    s_mov_b32 s54, s52
    s_mov_b32 s53, 0
    s_lshl_b32 s3, s2, 2
    s_add_u32 s3, s3, s{sJ}
    s_cmp_lg_u32 s3, 0
    s_cbranch_scc1 L_nocas
    s_atomic_cmpswap s[52:53], s[16:17], 0x0
    L_nocas:
    s_mov_b32 s64, 0x33333333
    s_mov_b32 s65, 0x33333333
    s_mov_b32 s66, 0xcccccccc
    s_mov_b32 s67, 0xcccccccc
    s_cmp_le_i32 s40, 0
    s_cselect_b64 s[64:65], 0, s[64:65]
    s_cmp_le_i32 s41, 0
    s_cselect_b32 s{sC1}, 0x8000, s41
    s_cselect_b64 s[66:67], 0, s[66:67]
    s_or_b64 s[64:65], s[64:65], s[66:67]
    s_min_u32 s{sC0}, s{sC0}, 0x8000
    s_min_u32 s{sC1}, s{sC1}, 0x8000
    s_add_u32 s{sNb0}, s{sC0}, 15
    s_lshr_b32 s{sNb0}, s{sNb0}, 4
    s_add_u32 s{sNb1}, s{sC1}, 15
    s_lshr_b32 s{sNb1}, s{sNb1}, 4
    """)
    for i in range(0, 64, 2): a(f"v_mov_b64 v[{vA+i}:{vA+i+1}], 0")
    a(f"""
    v_mov_b64 v[{vP}:{vP+1}], 0
    v_mov_b64 v[{vAq}:{vAq+1}], 0
    v_mov_b64 v[{vAq+2}:{vAq+3}], 0
    v_and_b32 v{vFl}, 31, v1
    s_lshl_b32 s3, s{sHead}, 5
    v_add_u32 v{vFl}, s3, v{vFl}
    v_lshlrev_b32 v{vFl}, 7, v{vFl}
    v_mov_b32 v{vL}, 0
    v_mov_b32 v{vM}, 0xf149f2ca
    v_mov_b32 v{vNeg}, 0xff800000
    s_mov_b32 s{sC}, {C_SCALE}
    v_mul_f32 v{vMC}, s{sC}, v{vM}
    s_mov_b32 s{sModd}, 0xf0f0f0f0
    s_mov_b32 s{sModd+1}, 0xf0f0f0f0
    s_mov_b32 s{sMhi}, 0xff00ff00
    s_mov_b32 s{sMhi+1}, 0xff00ff00
    s_mov_b32 s{sSelLo}, 0x05040100
    s_mov_b32 s{sSelHi}, 0x07060302
    s_getreg_b32 s3, hwreg(HW_REG_XCC_ID)
    s_and_b32 s3, s3, 7
    s_mov_b32 s{sBase}, {U(xcc[0] + base)}
    """)
    for x in range(1, 8):
        if U(xcc[x] + base) != U(xcc[0] + base):
            a(f"s_cmp_eq_u32 s3, {x}\ns_cselect_b32 s{sBase}, {U(xcc[x] + base)}, s{sBase}")
    if cu:
        a(f"s_getreg_b32 s3, hwreg(HW_REG_HW_ID, 8, 4)\ns_mul_i32 s3, s3, {U(cu)}\ns_add_u32 s{sBase}, s{sBase}, s3")
    if he:
        a(f"s_bitcmp0_b32 s{sHead}, 0\ns_cselect_b32 s3, {U(he)}, 0\ns_add_u32 s{sBase}, s{sBase}, s3")
    if w0:
        a(f"s_cmp_eq_u32 s{sJ}, 0\ns_cselect_b32 s3, {U(w0)}, 0\ns_add_u32 s{sBase}, s{sBase}, s3")
    a(f"""
    s_max_i32 s{sIncL}, s{sBase}, 0
    s_lshl_b32 s{sIncL}, s{sIncL}, 8
    s_sub_u32 s3, 0, s{sBase}
    s_max_i32 s{sIncS}, s3, 0
    s_lshl_b32 s{sIncS}, s{sIncS}, 8
    s_mov_b32 s{sFb}, 0
    s_cmp_lg_u32 s{sJ}, 0
    s_cbranch_scc1 L_w1
    s_waitcnt vmcnt({YOUNG+5+4*xclear})
    s_branch L_w2
    L_w1:
    s_waitcnt vmcnt({YOUNG})
    L_w2:
    """)
    stamp(1)
    a(f"""
    ds_write_b128 v{vX+6}, v[{vTb}:{vTb+3}]
    ds_write_b128 v{vX+6}, v[{vTb+4}:{vTb+7}] offset:16
    ds_write_b128 v{vX+7}, v[{vTb+8}:{vTb+11}]
    ds_write_b128 v{vX+7}, v[{vTb+12}:{vTb+15}] offset:16
    """)
    mk = [56, 58, 60, 62, 92, 94, 96, 98]
    for k in range(8):
        a(f"v_cmp_eq_u32 s[{mk[k]}:{mk[k]+1}], v{vTb+k}, v{vTb+8+k}")
    for k in range(1, 8):
        a(f"s_and_b64 s[{mk[k]}:{mk[k]+1}], s[{mk[k]}:{mk[k]+1}], s[{mk[k-1]}:{mk[k-1]+1}]")
    a(f"s_ff0_i32_b64 s3, s[{mk[7]}:{mk[7]+1}]")
    a(f"s_lshl_b32 s39, s{sJ}, 6\ns_add_u32 s39, s39, s3\ns_lshl_b32 s39, s39, 3")
    for k in range(7):
        a(f"s_bitcmp1_b64 s[{mk[k]}:{mk[k]+1}], s3\ns_addc_u32 s39, s39, 0")
    a(f"""
    s_cmp_lt_i32 s3, 0
    s_cselect_b32 s39, 2048, s39
    s_lshl_b32 s3, s{sJ}, 2
    v_mov_b32 v{vX}, s3
    v_mov_b32 v{vX+1}, s39
    ds_write_b32 v{vX}, v{vX+1} offset:{LDS_S}
    """)
    for i in range(8): a(f"v_cndmask_b32 v{vQ+i}, 0, v{vQ+i}, s[64:65]")
    a(f"""
    v_mov_b32 v{vX}, 0
    s_cmp_eq_u32 s{sJ}, 0
    s_cselect_b32 s{sSt}, 2, 0
    s_waitcnt lgkmcnt(0)
    s_barrier
    ds_read_b128 v[{vTb}:{vTb+3}], v{vX} offset:{LDS_S}
    s_waitcnt lgkmcnt(0)
    v_min_u32 v{vTb}, v{vTb}, v{vTb+1}
    v_min3_u32 v{vTb}, v{vTb}, v{vTb+2}, v{vTb+3}
    s_min_u32 s3, s{sNb0}, s{sNb1}
    v_readfirstlane_b32 s{sS}, v{vTb}
    s_min_u32 s{sS}, s{sS}, s3
    s_add_u32 s{sN}, s{sNb0}, s{sNb1}
    s_sub_u32 s{sN}, s{sN}, s{sS}
    s_sub_u32 s39, s{sS}, s{sNb0}
    s_lshl_b32 s66, s{sJ}, 2
    s_sub_u32 s64, s{sC0}, s66
    s_sub_u32 s65, s{sC1}, s66
    """)
    for r in range(2):
        b = vTb + r*8
        if not blk:
            a(f"""
            v_lshlrev_b32 v{b}, 5, v1
            s_add_u32 s3, s{sSl}, {r*2048}
            v_add_u32 v{b}, s3, v{b}
            """)
        else:
            a(f"""
            v_add_u32 v{b+4}, {64*r}, v1
            s_lshr_b32 s3, s{sN}, 7
            s_lshl_b32 s3, s3, 2
            v_cmp_gt_u32 vcc, s3, v{b+4}
            v_lshlrev_b32 v{b}, 5, v{b+4}
            v_and_b32 v{b+5}, 0xffffff80, v{b}
            v_add_u32 v{b}, s{sSl}, v{b}
            v_and_b32 v{b+4}, 3, v{b+4}
            s_lshl_b32 s3, s{sSl}, 2
            v_add3_u32 v{b+5}, v{b+5}, s3, v{b+4}
            v_cndmask_b32 v{b}, v{b}, v{b+5}, vcc
            """)
            if G > 1:
                W = 128 // G; lgW = int(math.log2(W)); SG = 32 // G
                a(f"""
                v_add_u32 v{b+4}, {64*r}, v1
                s_lshr_b32 s3, s{sN}, 7
                s_lshl_b32 s44, s3, 2
                v_cmp_gt_u32 vcc, s44, v{b+4}
                v_cmp_lt_u32 s[92:93], 3, v{b+4}
                s_sub_u32 s3, s3, 1
                s_lshr_b32 s44, s{sSl}, {int(math.log2(SG))}
                s_mul_i32 s3, s3, s44
                s_lshl_b32 s3, s3, {lgW}
                s_and_b32 s44, s{sSl}, {SG-1}
                s_lshl_b32 s44, s44, 2
                s_add_u32 s3, s3, s44
                s_add_u32 s3, s3, {128 - W}
                s_and_b64 vcc, vcc, s[92:93]
                v_lshrrev_b32 v{b+5}, 2, v{b+4}
                v_lshlrev_b32 v{b+5}, {lgW}, v{b+5}
                v_and_b32 v{b+4}, 3, v{b+4}
                v_add3_u32 v{b+5}, v{b+5}, s3, v{b+4}
                v_cndmask_b32 v{b}, v{b}, v{b+5}, vcc
                """)
        a(f"""
        v_cmp_gt_u32 s[{56+r*4}:{57+r*4}], s{sNb0}, v{b}
        v_add_u32 v{b+1}, s39, v{b}
        v_cmp_gt_u32 s[{58+r*4}:{59+r*4}], s{sN}, v{b}
        v_cndmask_b32 v{b+1}, v{b+1}, v{b}, s[{56+r*4}:{57+r*4}]
        v_min_u32 v{b+2}, 2047, v{b+1}
        v_lshlrev_b32 v{b+2}, 2, v{b+2}
        v_add_u32 v{b+4}, 0x2000, v{b+2}
        v_cndmask_b32 v{b+2}, v{b+4}, v{b+2}, s[{56+r*4}:{57+r*4}]
        ds_read_b32 v{b+3}, v{b+2}
        """)
    a(f"""
    v_mov_b32 v{vX+4}, 0x3333
    v_mov_b32 v{vX+5}, 0x33333333
    v_mov_b32 v{vX+6}, 0xcccc
    v_mov_b32 v{vX+7}, 0xcccccccc
    """)
    for r in range(2):
        b = vTb + r*8
        isA = f"s[{56+r*4}:{57+r*4}]"; valid = f"s[{58+r*4}:{59+r*4}]"
        d = vD0 + 3*r
        a(f"""
        v_lshlrev_b32 v{b+4}, 4, v{b+1}
        v_sub_u32 v{b+5}, s64, v{b+4}
        v_sub_u32 v{b+6}, s65, v{b+4}
        v_cmp_gt_u32 vcc, s{sS}, v{b}
        s_andn2_b64 s[92:93], {valid}, {isA}
        s_or_b64 s[92:93], s[92:93], vcc
        v_cndmask_b32 v{b+5}, 0, v{b+5}, {isA}
        v_cndmask_b32 v{b+6}, 0, v{b+6}, s[92:93]
        v_cmp_lt_i32 s[94:95], 0, v{b+5}
        v_cmp_lt_i32 s[96:97], 1, v{b+5}
        v_cmp_lt_i32 s[98:99], 2, v{b+5}
        v_cmp_lt_i32 vcc, 3, v{b+5}
        v_cndmask_b32 v{d+1}, 0, v{vX+4}, s[94:95]
        v_cndmask_b32 v{d+1}, v{d+1}, v{vX+5}, s[96:97]
        v_cndmask_b32 v{d+2}, 0, v{vX+4}, s[98:99]
        v_cndmask_b32 v{d+2}, v{d+2}, v{vX+5}, vcc
        v_cmp_lt_i32 s[94:95], 0, v{b+6}
        v_cmp_lt_i32 s[96:97], 1, v{b+6}
        v_cmp_lt_i32 s[98:99], 2, v{b+6}
        v_cmp_lt_i32 vcc, 3, v{b+6}
        v_cndmask_b32 v{vX+2}, 0, v{vX+6}, s[94:95]
        v_cndmask_b32 v{vX+2}, v{vX+2}, v{vX+7}, s[96:97]
        v_cndmask_b32 v{vX+3}, 0, v{vX+6}, s[98:99]
        v_cndmask_b32 v{vX+3}, v{vX+3}, v{vX+7}, vcc
        v_or_b32 v{d+1}, v{d+1}, v{vX+2}
        v_or_b32 v{d+2}, v{d+2}, v{vX+3}
        s_waitcnt lgkmcnt({1-r})
        v_lshlrev_b32 v{b+3}, 16, v{b+3}
        v_cmp_ne_u32 vcc, 0, v{d+1}
        v_add_u32 v{b+3}, s46, v{b+3}
        v_mov_b32 v{vX}, {OOB}
        v_cndmask_b32 v{d}, v{vX}, v{b+3}, vcc
        """)
    a(f"""
    s_sub_u32 s3, s{sN}, s{sSl}
    s_add_u32 s3, s3, 31
    s_ashr_i32 s3, s3, 5
    s_max_i32 s3, s3, 1
    s_lshl_b32 s39, s3, 5
    s_sub_u32 s39, s39, s{sN}
    s_mul_i32 s39, s39, {int(round(2 * phi * gain * SP / 4 / 128 * 2**24))}
    s_add_u32 s{sBase}, s{sBase}, s39
    s_add_u32 s3, s3, 3
    s_lshr_b32 s{sIt}, s3, 2
    s_mov_b32 s{sIdx}, 0
    s_lshl_b32 s{sAccL}, s{sJ}, 30
    s_mov_b32 s{sAccS}, s{sAccL}
    """)
    def fetch_off():
        a(f"""
        v_readlane_b32 s{sOff}, v{vD0}, s{sIdx}
        s_add_u32 s3, s{sIdx}, 1
        v_readlane_b32 s{sOff+1}, v{vD0}, s3
        s_add_u32 s3, s{sIdx}, 2
        v_readlane_b32 s{sOff+2}, v{vD0}, s3
        s_add_u32 s3, s{sIdx}, 3
        v_readlane_b32 s{sOff+3}, v{vD0}, s3
        """)
    def fetch_masks():
        for e in range(4):
            a(f"v_readlane_b32 s{sMask+2*e}, v{vD0+1}, s{sIdx}")
            a(f"v_readlane_b32 s{sMask+2*e+1}, v{vD0+2}, s{sIdx}")
            a(f"s_add_u32 s{sIdx}, s{sIdx}, 1")
    def next_off(tag):
        a(f"""
        s_cmp_lg_u32 s{sIdx}, 64
        s_cbranch_scc1 L_noswap{tag}
        v_mov_b32 v{vD0}, v{vD0+3}
        v_mov_b32 v{vD0+1}, v{vD0+4}
        v_mov_b32 v{vD0+2}, v{vD0+5}
        s_mov_b32 s{sIdx}, 0
        L_noswap{tag}:
        """)
        fetch_off()
    fetch_off()
    stamp(2)
    a(f"s_cmp_eq_u32 s47, 1\ns_nop 3\ns_cbranch_scc0 L_burst")
    hist_jump = list(a.hist)
    for x in range(P0, 16): load(x)
    fetch_masks()
    a("s_branch L_burst_qk")
    hist_jump2 = list(a.hist)
    def QK(e):
        d = vS + 4*e
        a(f"v_mfma_f32_16x16x32_bf16 v[{d}:{d+3}], v[{kslot(e,0)}:{kslot(e,0)+3}], v[{vQ}:{vQ+3}], 0")
        a(f"v_mfma_f32_16x16x32_bf16 v[{d}:{d+3}], v[{kslot(e,1)}:{kslot(e,1)+3}], v[{vQ+4}:{vQ+7}], v[{d}:{d+3}]")
    def RED(e):
        d = vS + 4*e
        a(f"""
        v_cndmask_b32 v{d}, v{d}, v{d+1}, s[{sModd}:{sModd+1}]
        v_cndmask_b32 v{d+2}, v{d+2}, v{d+3}, s[{sModd}:{sModd+1}]
        v_cndmask_b32 v{d}, v{d}, v{d+2}, s[{sMhi}:{sMhi+1}]
        v_add_f32_dpp v{d+1}, v{d}, v{d} row_ror:4 row_mask:0xf bank_mask:0xf
        v_add_f32_dpp v{d}, v{d+1}, v{d+1} row_ror:8 row_mask:0xf bank_mask:0xf
        v_cndmask_b32 v{d}, v{vNeg}, v{d}, s[{sMask+2*e}:{sMask+2*e+1}]
        """)
    def SM(wave_max):
        T = [vS + 4*e for e in range(4)]
        a(f"""
        v_max3_f32 v{vM}, v{vM}, v{T[0]}, v{T[1]}
        v_max3_f32 v{vM}, v{vM}, v{T[2]}, v{T[3]}
        """)
        if wave_max:
            a(f"""
            v_mov_b32 v{vX}, v{vM}
            v_permlane32_swap_b32 v{vM}, v{vX}
            v_max_f32 v{vM}, v{vM}, v{vX}
            v_mov_b32 v{vX}, v{vM}
            v_permlane16_swap_b32 v{vM}, v{vX}
            v_max_f32 v{vM}, v{vM}, v{vX}
            """)
        a(f"""
        v_mul_f32 v{vX}, s{sC}, v{vM}
        v_sub_f32 v{vAl}, v{vMC}, v{vX}
        v_fma_f32 v{T[0]}, v{T[0]}, s{sC}, -v{vX}
        v_fma_f32 v{T[1]}, v{T[1]}, s{sC}, -v{vX}
        v_fma_f32 v{T[2]}, v{T[2]}, s{sC}, -v{vX}
        v_fma_f32 v{T[3]}, v{T[3]}, s{sC}, -v{vX}
        v_exp_f32 v{vAl}, v{vAl}
        v_exp_f32 v{T[0]}, v{T[0]}
        v_exp_f32 v{T[1]}, v{T[1]}
        v_exp_f32 v{T[2]}, v{T[2]}
        v_exp_f32 v{T[3]}, v{T[3]}
        v_mov_b32 v{vMC}, v{vX}
        v_mov_b32_dpp v{vAq}, v{vAl} quad_perm:[0,0,0,0] row_mask:0xf bank_mask:0xf
        v_mov_b32_dpp v{vAq+1}, v{vAl} quad_perm:[1,1,1,1] row_mask:0xf bank_mask:0xf
        v_mov_b32_dpp v{vAq+2}, v{vAl} quad_perm:[2,2,2,2] row_mask:0xf bank_mask:0xf
        v_mov_b32_dpp v{vAq+3}, v{vAl} quad_perm:[3,3,3,3] row_mask:0xf bank_mask:0xf
        v_add_f32 v{vX}, v{T[0]}, v{T[1]}
        v_add_f32 v{vX+1}, v{T[2]}, v{T[3]}
        v_cvt_pk_bf16_f32 v{vP}, v{T[0]}, v{T[1]}
        v_cvt_pk_bf16_f32 v{vP+1}, v{T[2]}, v{T[3]}
        v_add_f32 v{vX}, v{vX}, v{vX+1}
        v_fma_f32 v{vL}, v{vL}, v{vAl}, v{vX}
        """)
    def RS(t0, t1):
        for t in range(t0, t1):
            r = vA + 4*t
            a(f"v_pk_mul_f32 v[{r}:{r+1}], v[{r}:{r+1}], v[{vAq}:{vAq+1}]")
            a(f"v_pk_mul_f32 v[{r+2}:{r+3}], v[{r+2}:{r+3}], v[{vAq+2}:{vAq+3}]")
    def PV(h, d0, d1):
        def perm(dd):
            t = vT + 2*(dd & 3); rr = dd >> 1; sel = sSelHi if dd & 1 else sSelLo
            a(f"v_perm_b32 v{t}, v{vslot(h,1)+rr}, v{vslot(h,0)+rr}, s{sel}")
            a(f"v_perm_b32 v{t+1}, v{vslot(h,3)+rr}, v{vslot(h,2)+rr}, s{sel}")
        def mm(dd):
            t = vT + 2*(dd & 3); r = vA + 4*(8*h + dd)
            a(f"v_mfma_f32_4x4x4_16b_bf16 v[{r}:{r+3}], v[{vP}:{vP+1}], v[{t}:{t+1}], v[{r}:{r+3}]")
        perm(d0)
        for dd in range(d0, d1):
            if dd + 1 < d1: perm(dd + 1)
            mm(dd)
    def FB(k=0):
        G = int(round(gain * SP / 4 / 128 * 2**24)); B0 = int(round((bias if k == 0 or bias2 is None else bias2) * 128))
        back = sum(1 for y in range(XPL + 1 - 8*k, 16 + 4 - 8*k) if (y % 16) % SP == SP - 1)
        a(f"""
        s_cmp_eq_u32 s{sFb}, 0
        s_mov_b32 s{sFb}, 1
        s_cbranch_scc1 L_nofb{k}
        """)
        if phys:
            a(f"""
            v_readfirstlane_b32 s3, v{vProg}
            s_mov_b32 s44, 0x00100010
            s_sub_u32 s3, {8 + back}, s3
            s_pack_ll_b32_b16 s3, s3, s3
            s_mov_b32 s45, 0x00040004
            v_pk_add_u16 v{vSib}, v{vSib}, s3
            v_pk_add_u16 v{vSib+1}, v{vSib+1}, s3
            s_mov_b32 s47, 0xfff8fff8
            v_pk_min_u16 v{vSib}, v{vSib}, s44
            v_pk_min_u16 v{vSib+1}, v{vSib+1}, s44
            v_pk_lshrrev_b16 v{vX}, s45, v{vSib}
            v_pk_lshrrev_b16 v{vX+1}, s45, v{vSib+1}
            v_pk_mad_u16 v{vSib}, v{vX}, s47, v{vSib}
            v_pk_mad_u16 v{vSib+1}, v{vX+1}, s47, v{vSib+1}
            v_pk_add_u16 v{vSib}, v{vSib}, v{vSib+1}
            s_mov_b32 s3, {B0 - 256*8}
            v_lshrrev_b32 v{vSib+1}, 16, v{vSib}
            v_and_b32 v{vSib}, 0xffff, v{vSib}
            v_add_u32 v{vSib}, v{vSib}, v{vSib+1}
            v_add_u32_dpp v{vSib}, v{vSib}, v{vSib} row_ror:1 row_mask:0xf bank_mask:0xf
            v_add_u32_dpp v{vSib}, v{vSib}, v{vSib} row_ror:2 row_mask:0xf bank_mask:0xf
            """)
        else:
            a(f"""
            v_add_u32 v{vSib}, v{vSib}, v{vSib+1}
            v_readfirstlane_b32 s3, v{vProg}
            v_add_u32_dpp v{vSib}, v{vSib}, v{vSib} row_ror:1 row_mask:0xf bank_mask:0xf
            s_sub_u32 s3, s3, {back}
            s_lshl_b32 s3, s3, 7
            v_add_u32_dpp v{vSib}, v{vSib}, v{vSib} row_ror:2 row_mask:0xf bank_mask:0xf
            s_sub_u32 s3, {B0}, s3
            """)
        a(f"""
        v_add_u32_dpp v{vSib}, v{vSib}, v{vSib} row_ror:4 row_mask:0xf bank_mask:0xf
        v_add_u32_dpp v{vSib}, v{vSib}, v{vSib} row_ror:8 row_mask:0xf bank_mask:0xf
        v_readlane_b32 s39, v{vSib}, 0
        v_readlane_b32 s44, v{vSib}, 16
        v_readlane_b32 s45, v{vSib}, 32
        v_readlane_b32 s47, v{vSib}, 48
        s_add_u32 s3, s3, s39
        s_add_u32 s44, s44, s45
        s_add_u32 s3, s3, s47
        s_add_u32 s3, s3, s44
        s_max_i32 s3, s3, -1024
        s_min_i32 s3, s3, 1024
        """)
        if dbg:
            a(f"s_add_u32 s30, s30, s3\ns_mul_i32 s39, s3, s3\ns_add_u32 s32, s32, s39")
        a(f"""
        s_mul_i32 s3, s3, {G}
        s_add_u32 s3, s3, s{sBase}
        s_min_i32 s3, s3, {int(umax * 2**24)}
        s_max_i32 s3, s3, {-int(umin * 2**24)}
        s_max_i32 s{sIncL}, s3, 0
        s_sub_u32 s3, 0, s3
        s_max_i32 s{sIncS}, s3, 0
        s_lshl_b32 s{sIncL}, s{sIncL}, 8
        s_lshl_b32 s{sIncS}, s{sIncS}, 8
        L_nofb{k}:
        """)
    def flag_store():
        a(f"""
        s_lshl_b32 s3, s{sHead}, 5
        s_add_u32 s3, s3, s{sSl}
        s_lshl_b32 s3, s3, 7
        v_lshlrev_b32 v{vTb}, 4, v1
        v_add_u32 v{vTb}, s3, v{vTb}
        v_mov_b32 v{vTb+4}, s{sTag}
        v_mov_b32 v{vTb+5}, s{sTag}
        v_mov_b32 v{vTb+6}, s{sTag}
        v_mov_b32 v{vTb+7}, s{sTag}
        s_cmp_eq_u32 s3, 0
        s_movk_i32 s3, 0xff
        s_cselect_b32 s3, s3, 0
        s_or_b32 exec_lo, s3, 0xff00
        s_mov_b32 exec_hi, 0
        global_store_dwordx4 v{vTb}, v[{vTb+4}:{vTb+7}], s[18:19] sc1
        s_mov_b64 exec, -1
        s_mov_b32 s{sSt}, 0
        """)
    def TAGSM():
        a(f"""
        s_cmp_eq_u32 s{sSt}, 0
        s_cbranch_scc1 L_st_done
        s_cmp_eq_u32 s{sSt}, 2
        s_cbranch_scc1 L_st_load
        v_readfirstlane_b32 s{sTag}, v{vNo}
        s_cmp_eq_u32 s{sTag}, 0
        s_cbranch_scc1 L_st_load
        """)
        flag_store()
        a(f"""
        s_branch L_st_done
        L_st_load:
        v_mov_b32 v{vTb}, 0
        global_load_dword v{vNo}, v{vTb}, s[16:17] sc1
        s_mov_b32 s{sSt}, 1
        L_st_done:
        """)
    sched = {0: [fetch_masks], 1: [lambda: PV(0, 0, 4)], 2: [lambda: PV(0, 4, 8)], 3: [lambda: RS(8, 16)], 4: [FB],
             5: [lambda: PV(1, 0, 4)], 6: [lambda: PV(1, 4, 8)], 7: [lambda: QK(0), TAGSM], 8: [lambda: RED(0)], 9: [lambda: QK(1)],
             10: [lambda: RED(1)], 11: [lambda: QK(2)], 12: [lambda: RED(2)], 13: [lambda: QK(3), lambda: RED(3)],
             14: [lambda: SM(False)], 15: [lambda: RS(0, 8)]}
    if fb2: sched[12].append(lambda: FB(1))
    assert (XPL - 16) <= 4 - R
    a.raw(".p2align 6")
    a("L_loop:")
    for x in range(16):
        a(f"""
        s_add_u32 s{sAccL}, s{sAccL}, s{sIncL}
        s_cbranch_scc1 L_lax{x}
        s_add_u32 s{sAccS}, s{sAccS}, s{sIncS}
        s_cbranch_scc0 L_nrm{x}
        s_waitcnt vmcnt({cnt(x-(R-2), x)})
        L_nrm{x}:
        s_waitcnt vmcnt({cnt(x-(R-1), x)})
        L_lax{x}:
        s_waitcnt vmcnt({cnt(x-R, x)})
        """)
        load(x)
        if x == 15: next_off(0)
        for t in sched[x]: t()
    if trace:
        for k, i in zip(trace, (1, 2, 4, 5)):
            a(f"s_cmp_lg_u32 s{sIt}, {k}\ns_cbranch_scc1 L_tr{i}\ns_memrealtime s[{STR[i]}:{STR[i]+1}]\nL_tr{i}:")
    a(f"s_sub_u32 s{sIt}, s{sIt}, 1\ns_cmp_gt_u32 s{sIt}, {B}\ns_cbranch_scc1 L_loop")
    a.check_backedge("L_loop")
    a("L_burst:")
    for x in range(8): load(x)
    fetch_masks()
    RS(8, 16)
    a(f"s_waitcnt vmcnt({cnt(11-16, 8)})")
    PV(0, 0, 8)
    for x in range(8, 12): load(x)
    a(f"s_waitcnt vmcnt({cnt(15-16, 12)})")
    PV(1, 0, 8)
    for x in range(12, 16): load(x)
    a("L_burst_qk:")
    a(f"""
    s_lshl_b32 s3, s{sIt}, 2
    s_add_u32 s3, s3, s{sJ}
    s_cmp_lg_u32 s3, 4
    s_cbranch_scc1 L_nopre
    s_cmp_lt_u32 s{sSl}, {32-C}
    s_cbranch_scc1 L_nopre
    global_load_dword v{vNo+1}, v{vFl}, s[18:19] offset:128 sc1
    L_nopre:
    """)
    for e in range(4):
        a(f"s_waitcnt vmcnt({cnt(2*e+1, 16)})")
        QK(e)
        if e: RED(e-1)
    RED(3); SM(True); RS(0, 8)
    a(f"s_sub_u32 s{sIt}, s{sIt}, 1\ns_cmp_eq_u32 s{sIt}, 0\ns_cbranch_scc1 L_drain")
    hist_d = list(a.hist)
    next_off(1)
    a(f"s_cmp_gt_u32 s{sIt}, {B}\ns_nop 1\ns_cbranch_scc1 L_loop")
    a.check_backedge("L_loop")
    a("s_branch L_burst")
    a.check_backedge("L_burst")
    a.check_jump("L_burst", hist_jump)
    a.check_jump("L_burst_qk", hist_jump2)
    a("L_drain:")
    a.hist = hist_d
    x0, x1 = vX, vX+1
    vCo, vCm, vOut, vCw = vTb+8, vTb+12, vTb+13, vTb+14
    RS(8, 16)
    lgC = 6 if pbf16 else 7
    a(f"""
    v_mov_b32 v{x1}, v{vL}
    v_lshrrev_b32 v{vX+2}, 4, v1
    v_and_b32 v{vX+3}, 15, v1
    v_permlane32_swap_b32 v{vL}, v{x1}
    v_lshlrev_b32 v{vX+2}, 3, v{vX+2}
    v_add_f32 v{vL}, v{vL}, v{x1}
    v_lshl_add_u32 v{vX+2}, v{vX+3}, 5, v{vX+2}
    v_mov_b32 v{x1}, v{vL}
    s_lshl_b32 s3, s{sJ}, 12
    v_add_u32 v{vX+2}, s3, v{vX+2}
    v_permlane16_swap_b32 v{vL}, v{x1}
    s_lshl_b32 s3, s{sJ}, 2
    v_add_f32 v{vL}, v{vL}, v{x1}
    v_lshlrev_b32 v{x1}, 4, v1
    v_add_u32 v{vX+3}, s3, v{x1}
    s_mov_b64 exec, 0xf
    ds_write_b32 v{vX+3}, v{vMC} offset:{LDS_M}
    ds_write_b32 v{vX+3}, v{vL} offset:{LDS_L}
    s_mov_b64 exec, -1
    s_lshl_b32 s3, s{sJ}, 4
    v_mov_b32 v{vX+4}, s3
    s_lshl_b32 s3, s{sJ}, 10
    v_add_u32 v{vX+5}, s3, v{x1}
    s_and_b32 s3, s{sSl}, 7
    s_lshl_b32 s3, s3, 2
    s_add_u32 s3, s3, s{sJ}
    s_lshr_b32 s44, s3, 3
    s_and_b32 s45, s3, 7
    s_lshl_b32 s39, s{sHead}, 2
    s_add_u32 s39, s39, s44
    v_lshrrev_b32 v{vX+6}, 3, v1
    v_and_b32 v{vX+7}, 7, v1
    v_lshlrev_b32 v{vCo}, {lgRB}, v{vX+6}
    v_lshl_add_u32 v{vCo}, v{vX+7}, {lgC-3}, v{vCo}
    s_lshl_b32 s3, s39, {lgRB+5}
    s_lshl_b32 s46, s45, {lgC}
    s_add_u32 s3, s3, s46
    s_add_u32 s3, s3, {DA_OFF}
    v_add_u32 v{vCo}, s3, v{vCo}
    s_lshl_b32 s3, s39, 12
    s_add_u32 s3, s3, {ML_OFF}
    v_lshlrev_b32 v{vCm}, 7, v{vX+6}
    v_add_u32 v{vCm}, s3, v{vCm}
    v_and_b32 v{vCw}, 31, v1
    v_lshlrev_b32 v{vCw}, 7, v{vCw}
    v_add_u32 v{vCw}, s3, v{vCw}
    v_add_u32 v{vCo+1}, {8*RB}, v{vCo}
    v_add_u32 v{vCo+2}, {16*RB}, v{vCo}
    v_add_u32 v{vCo+3}, {24*RB}, v{vCo}
    s_lshr_b32 s3, s44, 1
    s_lshl_b32 s3, s3, 13
    s_lshl_b32 s46, s{sHead}, 10
    s_add_u32 s3, s3, s46
    s_and_b32 s46, s44, 1
    s_lshl_b32 s46, s46, 9
    s_add_u32 s3, s3, s46
    s_lshl_b32 s46, s45, 6
    s_add_u32 s3, s3, s46
    v_lshrrev_b32 v{vOut}, 4, v1
    v_lshlrev_b32 v{vOut}, 1, v{vOut}
    v_lshl_add_u32 v{vOut}, v{vX+7}, 3, v{vOut}
    v_add_u32 v{vOut}, s3, v{vOut}
    s_mov_b64 s[56:57], -1
    s_mov_b64 s[58:59], -1
    s_mov_b64 s[60:61], -1
    s_mov_b64 s[62:63], -1
    s_waitcnt vmcnt({cnt(11, 16)})
    """)
    vW = vK
    def REDUCE(h):
        X = lambda dd, q: vA + 4*(8*h + dd) + q
        for dd in range(4):
            for q in range(4): a(f"v_permlane32_swap_b32 v{X(dd,q)}, v{X(dd+4,q)}")
        for dd in range(4):
            for q in (0, 2): a(f"v_pk_add_f32 v[{X(dd,q)}:{X(dd,q)+1}], v[{X(dd,q)}:{X(dd,q)+1}], v[{X(dd+4,q)}:{X(dd+4,q)+1}]")
        for dd in range(2):
            for q in range(4): a(f"v_permlane16_swap_b32 v{X(dd,q)}, v{X(dd+2,q)}")
        for q in range(4):
            w = vW + 8*h + 2*q
            a(f"v_add_f32 v{w}, v{X(0,q)}, v{X(2,q)}\nv_add_f32 v{w+1}, v{X(1,q)}, v{X(3,q)}")
            a(f"ds_write_b64 v{vX+2}, v[{w}:{w+1}] offset:{LDS_O + q*1024 + h*512}")
    PV(0, 0, 8)
    REDUCE(0)
    a("s_waitcnt vmcnt(0)")
    PV(1, 0, 8)
    stamp(3)
    REDUCE(1)
    a(f"""
    s_cmp_lg_u32 s{sJ}, 0
    s_cbranch_scc1 L_chk_ok
    s_cmp_eq_u32 s{sSt}, 0
    s_cbranch_scc1 L_have_tag
    s_mov_b32 s52, s54
    s_mov_b32 s53, 0
    s_waitcnt lgkmcnt(0)
    s_atomic_cmpswap s[52:53], s[16:17], 0x0 glc
    s_waitcnt lgkmcnt(0)
    s_cmp_eq_u32 s52, 0
    s_cselect_b32 s{sTag}, s54, s52
    """)
    flag_store()
    a(f"""
    L_have_tag:
    s_cmp_lt_u32 s{sSl}, {32-C}
    s_cbranch_scc1 L_chk_ok
    L_chk:
    v_cmp_ne_u32 vcc, s{sTag}, v{vNo+1}
    s_cbranch_vccz L_chk_ok
    global_load_dword v{vNo+1}, v{vFl}, s[18:19] offset:128 sc1
    s_waitcnt vmcnt(0)
    s_branch L_chk
    L_chk_ok:
    s_waitcnt lgkmcnt(0)
    """)
    stamp(4)
    a(f"""
    s_barrier
    ds_read_b128 v[{vS}:{vS+3}], v{vX+4} offset:{LDS_M}
    ds_read_b128 v[{vS+4}:{vS+7}], v{vX+4} offset:{LDS_L}
    """)
    for w in range(4):
        a(f"ds_read_b128 v[{vV+4*w}:{vV+4*w+3}], v{vX+5} offset:{LDS_O + w*4096}")
    if stamps: a("s_waitcnt lgkmcnt(0)")
    a(f"""
    s_waitcnt lgkmcnt(4)
    v_max_f32 v{vM}, v{vS}, v{vS+1}
    v_max3_f32 v{vM}, v{vM}, v{vS+2}, v{vS+3}
    """)
    for w in range(4): a(f"v_sub_f32 v{vS+w}, v{vS+w}, v{vM}")
    for w in range(4): a(f"v_exp_f32 v{vS+w}, v{vS+w}")
    a(f"s_waitcnt lgkmcnt(3)")
    for t in (0, 2): a(f"v_pk_mul_f32 v[{vW+t}:{vW+t+1}], v[{vV+t}:{vV+t+1}], v[{vS}:{vS+1}] op_sel_hi:[1,0]")
    for w in range(1, 4):
        a(f"s_waitcnt lgkmcnt({3-w})")
        for t in range(4): a(f"v_fmac_f32 v{vW+t}, v{vS+w}, v{vV+4*w+t}")
    if pbf16:
        a(f"""
        v_cvt_pk_bf16_f32 v{vW}, v{vW}, v{vW+1}
        v_cvt_pk_bf16_f32 v{vW+1}, v{vW+2}, v{vW+3}
        v_min_u32 v{vW}, -2, v{vW}
        v_min_u32 v{vW+1}, -2, v{vW+1}
        global_store_dwordx2 v{vPo}, v[{vW}:{vW+1}], s[18:19] sc1
        """)
    else:
        for t in range(4): a(f"v_min_u32 v{vW+t}, -2, v{vW+t}")
        a(f"global_store_dwordx4 v{vPo}, v[{vW}:{vW+3}], s[18:19] {ppol}")
    a(f"v_mul_f32 v{vM+1}, v{vS}, v{vS+4}")
    for w in range(1, 4): a(f"v_fmac_f32 v{vM+1}, v{vS+w}, v{vS+4+w}")
    a(f"""
    v_min_u32 v{vM}, -2, v{vM}
    v_min_u32 v{vM+1}, -2, v{vM+1}
    v_mov_b32 v{vM+2}, v{vM}
    v_mov_b32 v{vM+3}, v{vM+1}
    s_mov_b64 exec, 0xff
    global_store_dwordx4 v{vPm}, v[{vM}:{vM+3}], s[18:19] {ppol}
    """)
    stamp(5)
    a(f"""
    s_cmp_lt_u32 s{sSl}, {32-C}
    s_cbranch_scc1 L_fin
    L_poll:
    """)
    vO, vML = vV, vV+16
    a.lines.pop()
    def poll_round():
        for i in range(4):
            a(f"s_mov_b64 exec, s[{56+2*i}:{57+2*i}]")
            if PD == 1: a(f"s_cbranch_execz L_skip{i}")
            if pbf16: a(f"global_load_dwordx2 v[{vO+4*i}:{vO+4*i+1}], v{vCo+i}, s[18:19] sc1")
            else: a(f"global_load_dwordx4 v[{vO+4*i}:{vO+4*i+3}], v{vCo+i}, s[18:19] sc1")
            a(f"global_load_dwordx2 v[{vML+2*i}:{vML+2*i+1}], v{vCm}, s[18:19] offset:{1024*i} sc1")
            if PD == 1: a(f"L_skip{i}:")
    if mlfirst:
        a(f"""
        s_mov_b32 exec_lo, -1
        s_mov_b32 exec_hi, 0
        L_pml:
        global_load_dword v{vML}, v{vCw}, s[18:19] sc1
        s_waitcnt vmcnt(0)
        v_cmp_eq_u32 vcc, -1, v{vML}
        s_and_b64 exec, exec, vcc
        s_bcnt1_i32_b64 s3, exec
        s_cmp_gt_u32 s3, {mlk}
        s_cbranch_scc1 L_pml
        """)
    for k in range(PD - 1):
        poll_round()
        a(f"s_sleep {psl}")
    a("L_poll:")
    poll_round()
    a(f"s_mov_b64 exec, -1\ns_waitcnt vmcnt({8*(PD-1)})")
    for i in range(4):
        if pbf16:
            a(f"""
            v_max3_u32 v{vX+3}, v{vO+4*i}, v{vO+4*i+1}, v{vML+2*i}
            v_max_u32 v{vX+3}, v{vX+3}, v{vML+2*i+1}
            """)
        else:
            a(f"""
            v_max3_u32 v{vX+3}, v{vO+4*i}, v{vO+4*i+1}, v{vO+4*i+2}
            v_max3_u32 v{vX+4}, v{vO+4*i+3}, v{vML+2*i}, v{vML+2*i+1}
            v_max_u32 v{vX+3}, v{vX+3}, v{vX+4}
            """)
        a(f"v_cmp_eq_u32 s[{56+2*i}:{57+2*i}], -1, v{vX+3}")
    a(f"""
    s_or_b64 s[64:65], s[56:57], s[58:59]
    s_or_b64 s[66:67], s[60:61], s[62:63]
    s_or_b64 s[64:65], s[64:65], s[66:67]
    """)
    if psleep:
        a(f"s_cbranch_scc0 L_poll_done\ns_sleep {psleep}\ns_branch L_poll\nL_poll_done:")
    else:
        a("s_cbranch_scc1 L_poll")
    a.check_backedge("L_poll")
    stamp(6)
    m = vX+3; t = vX+4; vF = vS; vR = vS+4; vU = vA
    a(f"""
    v_max_f32 v{m}, v{vML}, v{vML+2}
    v_max3_f32 v{m}, v{m}, v{vML+4}, v{vML+6}
    """)
    if pbf16:
        for i in range(4):
            o = vO + 4*i; u = vU + 4*i
            a(f"""
            v_and_b32 v{u+3}, 0xffff0000, v{o+1}
            v_lshlrev_b32 v{u+2}, 16, v{o+1}
            v_and_b32 v{u+1}, 0xffff0000, v{o}
            v_lshlrev_b32 v{u}, 16, v{o}
            """)
    src = vU if pbf16 else vO
    a(f"""
    v_max_f32_dpp v{m}, v{m}, v{m} row_ror:8 row_mask:0xf bank_mask:0xf
    v_mov_b32 v{t}, v{m}
    v_permlane16_swap_b32 v{m}, v{t}
    v_max_f32 v{m}, v{m}, v{t}
    v_mov_b32 v{t}, v{m}
    v_permlane32_swap_b32 v{m}, v{t}
    v_max_f32 v{m}, v{m}, v{t}
    """)
    for i in range(4): a(f"v_sub_f32 v{vF+i}, v{vML+2*i}, v{m}")
    for i in range(4): a(f"v_exp_f32 v{vF+i}, v{vF+i}")
    a(f"v_mul_f32 v{m}, v{vF}, v{vML+1}")
    for k in (0, 2): a(f"v_pk_mul_f32 v[{vR+k}:{vR+k+1}], v[{src+k}:{src+k+1}], v[{vF}:{vF+1}] op_sel_hi:[1,0]")
    for i in range(1, 4):
        a(f"v_fmac_f32 v{m}, v{vF+i}, v{vML+2*i+1}")
        for k in range(4): a(f"v_fmac_f32 v{vR+k}, v{vF+i}, v{src+4*i+k}")
    a(f"""
    v_mov_b32 v{t}, v{m}
    v_permlane32_swap_b32 v{vR}, v{vR+2}
    v_permlane32_swap_b32 v{vR+1}, v{vR+3}
    v_permlane32_swap_b32 v{m}, v{t}
    v_add_f32 v{vR}, v{vR}, v{vR+2}
    v_add_f32 v{vR+1}, v{vR+1}, v{vR+3}
    v_add_f32 v{m}, v{m}, v{t}
    v_mov_b32 v{t}, v{m}
    v_permlane16_swap_b32 v{vR}, v{vR+1}
    v_permlane16_swap_b32 v{m}, v{t}
    v_add_f32 v{vR}, v{vR}, v{vR+1}
    v_add_f32 v{m}, v{m}, v{t}
    v_add_f32_dpp v{vR}, v{vR}, v{vR} row_ror:8 row_mask:0xf bank_mask:0xf
    v_add_f32_dpp v{m}, v{m}, v{m} row_ror:8 row_mask:0xf bank_mask:0xf
    v_rcp_f32 v{m}, v{m}
    s_mov_b32 exec_lo, 0x00ff00ff
    s_mov_b32 exec_hi, 0x00ff00ff
    v_mul_f32 v{vR}, v{vR}, v{m}
    v_cvt_pk_bf16_f32 v{vR}, v{vR}, v{vR}
    global_store_short v{vOut}, v{vR}, s[14:15] {opol}
    L_fin:
    """)
    if stamps and PD > 1: a("s_waitcnt vmcnt(0)")
    if stamps:
        a(f"""
        s_mov_b64 exec, -1
        s_cmp_lt_u32 s{sSl}, {32-C}
        s_cbranch_scc0 L_st1
        s_memrealtime s[100:101]
        L_st1:
        s_getreg_b32 s98, hwreg(HW_REG_XCC_ID)
        s_getreg_b32 s99, hwreg(HW_REG_HW_ID)
        s_lshl_b32 s3, s2, 2
        s_add_u32 s3, s3, s{sJ}
        s_lshl_b32 s3, s3, 6
        s_add_u32 s3, s3, 0x20000000
        v_mov_b32 v{x0}, s3
        s_waitcnt lgkmcnt(0)
        """)
        for i in range(7):
            a(f"v_mov_b32 v{vV+2*i}, s{STR[i]}\nv_mov_b32 v{vV+2*i+1}, s{STR[i]+1}")
        a(f"v_mov_b32 v{vV+14}, s98\nv_mov_b32 v{vV+15}, s99\ns_mov_b64 exec, 1")
        for i in range(4):
            a(f"global_store_dwordx4 v{x0}, v[{vV+4*i}:{vV+4*i+3}], s[18:19] offset:{16*i}")
    a("L_end:\ns_endpgm")
    if diag:
        from diag import diag_kernel
        diag_kernel(a, 1024, **diag)
    def kd(name, nv, ns):
        a.raw(f""".amdhsa_kernel {name}
  .amdhsa_next_free_vgpr {nv}
  .amdhsa_next_free_sgpr {ns}
  .amdhsa_accum_offset {min(256,(nv+3)//4*4)}
  .amdhsa_group_segment_fixed_size 0
  .amdhsa_kernarg_size 64
  .amdhsa_user_sgpr_count 2
  .amdhsa_user_sgpr_kernarg_segment_ptr 1
  .amdhsa_system_sgpr_workgroup_id_x 1
  .amdhsa_float_denorm_mode_32 3
.end_amdhsa_kernel""")
    a.raw('.section .rodata,"a"\n.p2align 6')
    kd(KNAME, nvg, 102)
    if diag:
        a.raw(".p2align 6")
        kd("diag_kernel", 64, 32)
    return a.text()

if __name__ == "__main__":
    out = sys.argv[1]
    kw = eval("dict(" + (sys.argv[2] if len(sys.argv) > 2 else "") + ")")
    open(out, "w").write(gen(**kw))
```

```python
import sys, math, struct
from asmlib import Asm
KNAME = "standalone__paged_block_table_kv_radixattention__decode_kernel"
HDR = open("standalone__paged_block_table_kv_radixattention__decode.s.ref").read().split("; Override launch")[0]
C_SCALE = 0x3db8aa3b

vKo, vVo = 2, 3
vQ = 4
vD0 = 12
vM, vMC, vL, vAl = 18, 19, 20, 21
vAq = 22
vP = 26
vS = 28
vT = 44
vK = 52
vV = 84
vA = 116
vNeg = 180
vPo, vPm, vFl = 181, 182, 183
vX = 184
vTb = 192
vNo = 208
vPrA, vProg, vPrL, vSib = 210, 211, 212, 214
NVG = 216
sJ, sHead, sSl = 36, 37, 38
sBase = 43
sOff = 48
sIncL = 55
sMask = 56
sAccS, sAccL, sIncS, sTag = 68, 69, 70, 71
sIdx, sIt = 72, 73
sModd, sMhi = 74, 76
sSelLo, sSelHi, sC = 78, 79, 80
sN, sS, sNb0, sNb1, sC0, sC1 = 81, 82, 83, 84, 85, 86
sSt, sFb = 87, 42
OOB = 0xF0000000
PR_OFF, ML_OFF, DA_OFF = 0x9000, 0x10000, 0x40000
LDS_S, LDS_M, LDS_L, LDS_O = 16384, 16448, 16512, 20480
R = 6

def kslot(e, h): return vK + (2*e + h)*4
def vslot(h, e): return vV + (4*h + e)*4

def gen(pol="nt", stamps=False, lds=98304, diag=None, P0=8, B=1, blk=True, trace=None, nvg=NVG,
        xcc=(0.95, 0, 0.95, 0.05, 1.2, 0.1, 1.35, 0.1), base=1.6, sens=8.0,
        gain=0.25, bias=-0.2, umax=0.75, umin=0.75, SP=8, XPL=13, dbg=False, pbf16=False, remap=False, PD=1, psl=4, opol='', prpol='', ppol='sc1', fb2=False, bias2=None, G=1, cu=0.08, he=0.45, w0=0.15, xclear=0, phys=True, psleep=0, mlfirst=True, mlk=8, phi=0.2, echk=True, cons=0.4, cpf=3, sst=False, dry=False, late=False):
    a = Asm()
    C = 8
    STR = [28, 30, 32, 34, 88, 90, 100]
    def stamp(i):
        if (trace or sst) and i in (1, 2, 4, 5): return
        if dbg and i in (1, 2):
            a(f"s_mov_b64 s[{STR[i]}:{STR[i]+1}], 0"); return
        if stamps: a(f"s_memrealtime s[{STR[i]}:{STR[i]+1}]")
    def load(x):
        if x < 8:
            e, h = x >> 1, x & 1
            r = kslot(e, h)
            a(f"buffer_load_dwordx4 v[{r}:{r+3}], v{vKo}, s[20:23], s{sOff+e} offen offset:{h*256} {pol}")
        else:
            h, e = (x - 8) >> 2, (x - 8) & 3
            r = vslot(h, e)
            a(f"buffer_load_dwordx4 v[{r}:{r+3}], v{vVo}, s[24:27], s{sOff+e} offen offset:{h*256} {pol}")
        if x % SP == SP - 1:
            a(f"""
            v_add_u32 v{vProg}, 1, v{vProg}
            s_mov_b64 exec, 1
            global_store_{'short' if phys else 'dword'} v{vPrA}, v{vProg}, s[18:19] {prpol}
            s_mov_b64 exec, -1
            """)
        if x == XPL or (fb2 and x == XPL - 8):
            a(f"global_load_dwordx2 v[{vSib}:{vSib+1}], v{vPrL}, s[18:19] nt")
    def extra(y):
        y %= 16
        return (1 if y % SP == SP - 1 else 0) + (1 if (y == XPL or (fb2 and y == XPL - 8)) else 0)
    def cnt(target, now):
        return sum((1 if y > target else 0) + extra(y) for y in range(target, now))

    a.raw(HDR.rstrip("\n"))
    if diag:
        a.raw(f"; @launch kernel={KNAME} grid=(256,1,1) block=(256,1,1) lds={lds}")
        a.raw("; @launch kernel=diag_kernel grid=(1,1,1) block=(64,1,1) lds=0")
    else:
        a.raw(f"; @launch grid=(256,1,1) block=(256,1,1) lds={lds}")
    a.raw('.amdgcn_target "amdgcn-amd-amdhsa--gfx950"\n.text')
    a.raw(f".globl {KNAME}\n.p2align 8\n.type {KNAME},@function\n{KNAME}:")
    stamp(0)
    a("s_load_dwordx16 s[4:19], s[0:1], 0")
    if cpf == 1:
        a(f"""
        s_getpc_b64 s[92:93]
        v_lshlrev_b32 v{vNo+1}, 7, v0
        v_and_b32 v{vNo+1}, 0x1fff, v{vNo+1}
        global_load_dword v{vNo}, v{vNo+1}, s[92:93]
        """)
    if cpf == 3:
        a(f"""
        s_getpc_b64 s[92:93]
        L_pc:
        v_lshlrev_b32 v{vNo+1}, 7, v0
        v_cmp_gt_u32 vcc, ((L_end-L_pc)>>7)+1, v0
        s_and_saveexec_b64 s[94:95], vcc
        s_cbranch_execz L_nopf
        global_load_dword v{vNo}, v{vNo+1}, s[92:93]
        L_nopf:
        s_mov_b64 exec, -1
        """)
    if cpf == 2:
        a(f"""
        s_getpc_b64 s[92:93]
        v_lshlrev_b32 v{vNo+1}, 7, v0
        v_cmp_gt_u32 vcc, 64, v0
        s_and_saveexec_b64 s[94:95], vcc
        s_cbranch_execz L_nopf
        global_load_dword v{vNo}, v{vNo+1}, s[92:93]
        L_nopf:
        s_mov_b64 exec, -1
        """)
    a(f"""
    s_cmp_ge_u32 s2, 256
    s_cbranch_scc1 L_end
    v_lshrrev_b32 v{vX}, 6, v0
    v_and_b32 v1, 63, v0
    s_lshr_b32 s{sHead}, s2, 3
    v_readfirstlane_b32 s{sJ}, v{vX}
    s_and_b32 s{sHead}, s{sHead}, 7
    """)
    if remap:
        a(f"""
        s_bfe_u32 s{sSl}, s2, 0x20001
        s_lshr_b32 s3, s2, 6
        s_lshl_b32 s3, s3, 2
        s_add_u32 s{sSl}, s{sSl}, s3
        s_andn2_b32 s3, 1, s2
        s_lshl_b32 s3, s3, 4
        s_add_u32 s{sSl}, s{sSl}, s3
        """)
    else:
        a(f"""
        s_and_b32 s{sSl}, s2, 7
        s_lshr_b32 s3, s2, 6
        s_lshl_b32 s3, s3, 3
        s_add_u32 s{sSl}, s{sSl}, s3
        """)
    a(f"""
    s_lshl_b32 s39, s{sHead}, 9
    v_lshrrev_b32 v{vX}, 4, v1
    v_bfe_u32 v{vX+1}, v1, 2, 2
    v_and_b32 v{vX+2}, 3, v1
    v_lshlrev_b32 v{vX+3}, 6, v{vX}
    v_lshl_add_u32 v{vKo}, v{vX+1}, 12, v{vX+3}
    v_lshl_add_u32 v{vKo}, v{vX+2}, 4, v{vKo}
    v_add_u32 v{vKo}, s39, v{vKo}
    v_and_b32 v{vX+4}, 15, v1
    v_lshlrev_b32 v{vVo}, 12, v{vX}
    v_lshl_add_u32 v{vVo}, v{vX+4}, 4, v{vVo}
    v_add_u32 v{vVo}, s39, v{vVo}
    v_lshl_add_u32 v{vX+5}, v{vX+1}, 4, v{vX+3}
    v_lshrrev_b32 v{vX+6}, 1, v{vX+2}
    v_lshl_add_u32 v{vX+5}, v{vX+6}, 13, v{vX+5}
    v_and_b32 v{vX+6}, 1, v1
    v_lshl_add_u32 v{vX+5}, v{vX+6}, 9, v{vX+5}
    s_lshl_b32 s39, s39, 1
    v_add_u32 v{vX+5}, s39, v{vX+5}
    v_lshlrev_b32 v{vX+6}, 5, v0
    v_add_u32 v{vX+7}, 0x2000, v{vX+6}
    s_lshl_b32 s3, s{sSl}, {4 if blk else 2}
    s_mov_b32 s22, 201326592
    s_mov_b32 s23, 0x20000
    s_mov_b32 s26, 201326592
    s_mov_b32 s27, 0x20000
    s_waitcnt lgkmcnt(0)
    {"s_memrealtime s[30:31]" if sst else ""}
    s_load_dwordx2 s[40:41], s[12:13], 0
    s_add_u32 s44, s10, s3
    s_addc_u32 s45, s11, 0
    """)
    if blk:
        a(f"s_load_dwordx4 s[{sOff}:{sOff+3}], s[44:45], 0")
    else:
        for e in range(4): a(f"s_load_dword s{sOff+e}, s[44:45], {128*e}")
    RB = 512 if pbf16 else 1024
    lgRB = 9 if pbf16 else 10
    a(f"""
    s_load_dword s53, s[18:19], 0
    global_load_dwordx4 v[{vTb}:{vTb+3}], v{vX+6}, s[10:11]
    global_load_dwordx4 v[{vTb+4}:{vTb+7}], v{vX+6}, s[10:11] offset:16
    global_load_dwordx4 v[{vTb+8}:{vTb+11}], v{vX+7}, s[10:11]
    global_load_dwordx4 v[{vTb+12}:{vTb+15}], v{vX+7}, s[10:11] offset:16
    global_load_dwordx4 v[{vQ}:{vQ+3}], v{vX+5}, s[4:5]
    global_load_dwordx4 v[{vQ+4}:{vQ+7}], v{vX+5}, s[4:5] offset:256
    s_mov_b32 s20, s6
    s_and_b32 s21, s7, 0xffff
    s_mov_b32 s24, s8
    s_and_b32 s25, s9, 0xffff
    """)
    def PUB():
        a(f"""
        s_lshl_b32 s3, s{sHead}, 2
        s_add_u32 s3, s3, s{sJ}
        s_lshl_b32 s3, s3, 5
        s_add_u32 s3, s3, s{sSl}
        s_lshl_b32 s39, s3, {lgRB}
        s_add_u32 s39, s39, {DA_OFF}
        v_lshlrev_b32 v{vPo}, {3 if pbf16 else 4}, v1
        v_add_u32 v{vPo}, s39, v{vPo}
        s_lshl_b32 s39, s3, 7
        s_add_u32 s39, s39, {ML_OFF}
        v_lshlrev_b32 v{vPm}, 4, v1
        v_add_u32 v{vPm}, s39, v{vPm}
        s_cmp_lg_u32 s{sJ}, 0
        s_cbranch_scc1 L_noclear
        v_mov_b64 v[{vS}:{vS+1}], -1
        v_mov_b64 v[{vS+2}:{vS+3}], -1
        v_add_u32 v{vS+4}, {32*RB}, v{vPo}
        v_add_u32 v{vS+5}, {64*RB}, v{vPo}
        v_add_u32 v{vS+6}, {96*RB}, v{vPo}
        v_lshrrev_b32 v{vS+7}, 3, v1
        v_mul_u32_u24 v{vS+7}, {4096-128}, v{vS+7}
        v_add_u32 v{vS+7}, v{vS+7}, v{vPm}
        """)
        for r in (vPo, vS+4, vS+5, vS+6):
            if pbf16: a(f"global_store_dwordx2 v{r}, v[{vS}:{vS+1}], s[18:19] sc1")
            else: a(f"global_store_dwordx4 v{r}, v[{vS}:{vS+3}], s[18:19] sc1")
        for k in range(xclear):
            for r in (vPo, vS+4, vS+5, vS+6):
                a(f"v_add_u32 v{vS+8}, {0x200000*(k+1)}, v{r}\nglobal_store_dwordx4 v{vS+8}, v[{vS}:{vS+3}], s[18:19] sc1")
        a(f"""
        s_mov_b32 exec_hi, 0
        global_store_dwordx4 v{vS+7}, v[{vS}:{vS+3}], s[18:19] sc1
        s_mov_b64 exec, -1
        L_noclear:
        """)
    if not late: PUB()
    a(f"""
    s_lshl_b32 s46, s{sJ}, 14
    """)
    if phys:
        a(f"""
        s_getreg_b32 s3, hwreg(HW_REG_XCC_ID, 0, 3)
        s_lshl_b32 s3, s3, 9
        s_add_u32 s3, s3, {PR_OFF}
        v_lshlrev_b32 v{vPrL}, 3, v1
        v_add_u32 v{vPrL}, s3, v{vPrL}
        s_getreg_b32 s39, hwreg(HW_REG_HW_ID, 13, 2)
        s_lshl_b32 s39, s39, 7
        s_add_u32 s3, s3, s39
        s_getreg_b32 s39, hwreg(HW_REG_HW_ID, 8, 4)
        s_lshl_b32 s39, s39, 3
        s_add_u32 s3, s3, s39
        s_lshl_b32 s39, s{sJ}, 1
        s_add_u32 s3, s3, s39
        v_mov_b32 v{vPrA}, s3
        v_mov_b32 v{vProg}, 0x5a00
        """)
    else:
        a(f"""
        s_and_b32 s3, s2, 7
        s_lshl_b32 s3, s3, 9
        s_add_u32 s3, s3, {PR_OFF}
        v_lshlrev_b32 v{vPrL}, 3, v1
        v_add_u32 v{vPrL}, s3, v{vPrL}
        s_lshr_b32 s39, s2, 3
        s_lshl_b32 s39, s39, 2
        s_add_u32 s39, s39, s{sJ}
        s_lshl_b32 s39, s39, 2
        s_add_u32 s3, s3, s39
        v_mov_b32 v{vPrA}, s3
        v_mov_b32 v{vProg}, 0
        """)
    a(f"""
    s_waitcnt lgkmcnt(0)
    """)
    for e in range(4):
        a(f"s_lshl_b32 s{sOff+e}, s{sOff+e}, 16\ns_add_u32 s{sOff+e}, s{sOff+e}, s46")
    a(f"""
    s_cmp_le_i32 s40, 0
    s_cselect_b32 s{sC0}, 0x8000, s40
    s_cmp_gt_u32 s{sC0}, 2047
    s_cselect_b32 s47, 1, 0
    s_cbranch_scc0 L_noearly
    """)
    if sst: a("s_memrealtime s[32:33]")
    for x in range(P0): load(x)
    YOUNG = cnt(-1, P0) - extra(-1)
    a("s_branch L_early_done\nL_noearly:")
    for i in range(0, 32, 2): a(f"v_mov_b64 v[{vV+i}:{vV+i+1}], 0")
    a("s_waitcnt vmcnt(0)\nL_early_done:")
    if late: PUB()
    U = lambda lag: int(round(lag / sens * 2**24))
    a(f"""
    s_add_u32 s52, s53, 1
    s_max_u32 s52, s52, 1
    s_mov_b32 s54, s52
    s_mov_b32 s53, 0
    s_lshl_b32 s3, s2, 2
    s_add_u32 s3, s3, s{sJ}
    s_cmp_lg_u32 s3, 0
    s_cbranch_scc1 L_nocas
    s_atomic_cmpswap s[52:53], s[16:17], 0x0
    L_nocas:
    s_mov_b32 s64, 0x33333333
    s_mov_b32 s65, 0x33333333
    s_mov_b32 s66, 0xcccccccc
    s_mov_b32 s67, 0xcccccccc
    s_cmp_le_i32 s40, 0
    s_cselect_b64 s[64:65], 0, s[64:65]
    s_cmp_le_i32 s41, 0
    s_cselect_b32 s{sC1}, 0x8000, s41
    s_cselect_b64 s[66:67], 0, s[66:67]
    s_or_b64 s[64:65], s[64:65], s[66:67]
    s_min_u32 s{sC0}, s{sC0}, 0x8000
    s_min_u32 s{sC1}, s{sC1}, 0x8000
    s_add_u32 s{sNb0}, s{sC0}, 15
    s_lshr_b32 s{sNb0}, s{sNb0}, 4
    s_add_u32 s{sNb1}, s{sC1}, 15
    s_lshr_b32 s{sNb1}, s{sNb1}, 4
    """)
    for i in range(0, 64, 2): a(f"v_mov_b64 v[{vA+i}:{vA+i+1}], 0")
    a(f"""
    v_mov_b64 v[{vP}:{vP+1}], 0
    v_mov_b64 v[{vAq}:{vAq+1}], 0
    v_mov_b64 v[{vAq+2}:{vAq+3}], 0
    v_and_b32 v{vFl}, 31, v1
    s_lshl_b32 s3, s{sHead}, 5
    v_add_u32 v{vFl}, s3, v{vFl}
    v_lshlrev_b32 v{vFl}, 7, v{vFl}
    v_mov_b32 v{vL}, 0
    v_mov_b32 v{vM}, 0xf149f2ca
    v_mov_b32 v{vNeg}, 0xff800000
    s_mov_b32 s{sC}, {C_SCALE}
    v_mul_f32 v{vMC}, s{sC}, v{vM}
    s_mov_b32 s{sModd}, 0xf0f0f0f0
    s_mov_b32 s{sModd+1}, 0xf0f0f0f0
    s_mov_b32 s{sMhi}, 0xff00ff00
    s_mov_b32 s{sMhi+1}, 0xff00ff00
    s_mov_b32 s{sSelLo}, 0x05040100
    s_mov_b32 s{sSelHi}, 0x07060302
    s_getreg_b32 s3, hwreg(HW_REG_XCC_ID)
    s_and_b32 s3, s3, 7
    s_mov_b32 s{sBase}, {U(xcc[0] + base)}
    """)
    for x in range(1, 8):
        if U(xcc[x] + base) != U(xcc[0] + base):
            a(f"s_cmp_eq_u32 s3, {x}\ns_cselect_b32 s{sBase}, {U(xcc[x] + base)}, s{sBase}")
    if cu:
        a(f"s_getreg_b32 s3, hwreg(HW_REG_HW_ID, 8, 4)\ns_mul_i32 s3, s3, {U(cu)}\ns_add_u32 s{sBase}, s{sBase}, s3")
    if he:
        a(f"s_bitcmp0_b32 s{sHead}, 0\ns_cselect_b32 s3, {U(he)}, 0\ns_add_u32 s{sBase}, s{sBase}, s3")
    if cons:
        a(f"s_cmp_ge_u32 s{sSl}, 24\ns_cselect_b32 s3, {U(cons)}, 0\ns_add_u32 s{sBase}, s{sBase}, s3")
    if w0:
        a(f"s_cmp_eq_u32 s{sJ}, 0\ns_cselect_b32 s3, {U(w0)}, 0\ns_add_u32 s{sBase}, s{sBase}, s3")
    a(f"""
    s_max_i32 s{sIncL}, s{sBase}, 0
    s_lshl_b32 s{sIncL}, s{sIncL}, 8
    s_sub_u32 s3, 0, s{sBase}
    s_max_i32 s{sIncS}, s3, 0
    s_lshl_b32 s{sIncS}, s{sIncS}, 8
    s_mov_b32 s{sFb}, 0
    s_cmp_lg_u32 s{sJ}, 0
    s_cbranch_scc1 L_w1
    s_waitcnt vmcnt({YOUNG+5+4*xclear})
    s_branch L_w2
    L_w1:
    s_waitcnt vmcnt({YOUNG})
    L_w2:
    """)
    stamp(1)
    a(f"""
    ds_write_b128 v{vX+6}, v[{vTb}:{vTb+3}]
    ds_write_b128 v{vX+6}, v[{vTb+4}:{vTb+7}] offset:16
    ds_write_b128 v{vX+7}, v[{vTb+8}:{vTb+11}]
    ds_write_b128 v{vX+7}, v[{vTb+12}:{vTb+15}] offset:16
    """)
    mk = [56, 58, 60, 62, 92, 94, 96, 98]
    for k in range(8):
        a(f"v_cmp_eq_u32 s[{mk[k]}:{mk[k]+1}], v{vTb+k}, v{vTb+8+k}")
    for k in range(1, 8):
        a(f"s_and_b64 s[{mk[k]}:{mk[k]+1}], s[{mk[k]}:{mk[k]+1}], s[{mk[k-1]}:{mk[k-1]+1}]")
    a(f"s_ff0_i32_b64 s3, s[{mk[7]}:{mk[7]+1}]")
    a(f"s_lshl_b32 s39, s{sJ}, 6\ns_add_u32 s39, s39, s3\ns_lshl_b32 s39, s39, 3")
    for k in range(7):
        a(f"s_bitcmp1_b64 s[{mk[k]}:{mk[k]+1}], s3\ns_addc_u32 s39, s39, 0")
    a(f"""
    s_cmp_lt_i32 s3, 0
    s_cselect_b32 s39, 2048, s39
    s_lshl_b32 s3, s{sJ}, 2
    v_mov_b32 v{vX}, s3
    v_mov_b32 v{vX+1}, s39
    ds_write_b32 v{vX}, v{vX+1} offset:{LDS_S}
    """)
    for i in range(8): a(f"v_cndmask_b32 v{vQ+i}, 0, v{vQ+i}, s[64:65]")
    a(f"""
    v_mov_b32 v{vX}, 0
    s_cmp_eq_u32 s{sJ}, 0
    s_cselect_b32 s{sSt}, 4, 0
    s_waitcnt lgkmcnt(0)
    s_barrier
    ds_read_b128 v[{vTb}:{vTb+3}], v{vX} offset:{LDS_S}
    s_waitcnt lgkmcnt(0)
    v_min_u32 v{vTb}, v{vTb}, v{vTb+1}
    v_min3_u32 v{vTb}, v{vTb}, v{vTb+2}, v{vTb+3}
    s_min_u32 s3, s{sNb0}, s{sNb1}
    v_readfirstlane_b32 s{sS}, v{vTb}
    s_min_u32 s{sS}, s{sS}, s3
    s_add_u32 s{sN}, s{sNb0}, s{sNb1}
    s_sub_u32 s{sN}, s{sN}, s{sS}
    s_sub_u32 s39, s{sS}, s{sNb0}
    s_lshl_b32 s66, s{sJ}, 2
    s_sub_u32 s64, s{sC0}, s66
    s_sub_u32 s65, s{sC1}, s66
    """)
    for r in range(2):
        b = vTb + r*8
        if not blk:
            a(f"""
            v_lshlrev_b32 v{b}, 5, v1
            s_add_u32 s3, s{sSl}, {r*2048}
            v_add_u32 v{b}, s3, v{b}
            """)
        else:
            a(f"""
            v_add_u32 v{b+4}, {64*r}, v1
            s_lshr_b32 s3, s{sN}, 7
            s_lshl_b32 s3, s3, 2
            v_cmp_gt_u32 vcc, s3, v{b+4}
            v_lshlrev_b32 v{b}, 5, v{b+4}
            v_and_b32 v{b+5}, 0xffffff80, v{b}
            v_add_u32 v{b}, s{sSl}, v{b}
            v_and_b32 v{b+4}, 3, v{b+4}
            s_lshl_b32 s3, s{sSl}, 2
            v_add3_u32 v{b+5}, v{b+5}, s3, v{b+4}
            v_cndmask_b32 v{b}, v{b}, v{b+5}, vcc
            """)
            if G > 1:
                W = 128 // G; lgW = int(math.log2(W)); SG = 32 // G
                a(f"""
                v_add_u32 v{b+4}, {64*r}, v1
                s_lshr_b32 s3, s{sN}, 7
                s_lshl_b32 s44, s3, 2
                v_cmp_gt_u32 vcc, s44, v{b+4}
                v_cmp_lt_u32 s[92:93], 3, v{b+4}
                s_sub_u32 s3, s3, 1
                s_lshr_b32 s44, s{sSl}, {int(math.log2(SG))}
                s_mul_i32 s3, s3, s44
                s_lshl_b32 s3, s3, {lgW}
                s_and_b32 s44, s{sSl}, {SG-1}
                s_lshl_b32 s44, s44, 2
                s_add_u32 s3, s3, s44
                s_add_u32 s3, s3, {128 - W}
                s_and_b64 vcc, vcc, s[92:93]
                v_lshrrev_b32 v{b+5}, 2, v{b+4}
                v_lshlrev_b32 v{b+5}, {lgW}, v{b+5}
                v_and_b32 v{b+4}, 3, v{b+4}
                v_add3_u32 v{b+5}, v{b+5}, s3, v{b+4}
                v_cndmask_b32 v{b}, v{b}, v{b+5}, vcc
                """)
        a(f"""
        v_cmp_gt_u32 s[{56+r*4}:{57+r*4}], s{sNb0}, v{b}
        v_add_u32 v{b+1}, s39, v{b}
        v_cmp_gt_u32 s[{58+r*4}:{59+r*4}], s{sN}, v{b}
        v_cndmask_b32 v{b+1}, v{b+1}, v{b}, s[{56+r*4}:{57+r*4}]
        v_min_u32 v{b+2}, 2047, v{b+1}
        v_lshlrev_b32 v{b+2}, 2, v{b+2}
        v_add_u32 v{b+4}, 0x2000, v{b+2}
        v_cndmask_b32 v{b+2}, v{b+4}, v{b+2}, s[{56+r*4}:{57+r*4}]
        ds_read_b32 v{b+3}, v{b+2}
        """)
    a(f"""
    v_mov_b32 v{vX+4}, 0x3333
    v_mov_b32 v{vX+5}, 0x33333333
    v_mov_b32 v{vX+6}, 0xcccc
    v_mov_b32 v{vX+7}, 0xcccccccc
    """)
    for r in range(2):
        b = vTb + r*8
        isA = f"s[{56+r*4}:{57+r*4}]"; valid = f"s[{58+r*4}:{59+r*4}]"
        d = vD0 + 3*r
        a(f"""
        v_lshlrev_b32 v{b+4}, 4, v{b+1}
        v_sub_u32 v{b+5}, s64, v{b+4}
        v_sub_u32 v{b+6}, s65, v{b+4}
        v_cmp_gt_u32 vcc, s{sS}, v{b}
        s_andn2_b64 s[92:93], {valid}, {isA}
        s_or_b64 s[92:93], s[92:93], vcc
        v_cndmask_b32 v{b+5}, 0, v{b+5}, {isA}
        v_cndmask_b32 v{b+6}, 0, v{b+6}, s[92:93]
        v_cmp_lt_i32 s[94:95], 0, v{b+5}
        v_cmp_lt_i32 s[96:97], 1, v{b+5}
        v_cmp_lt_i32 s[98:99], 2, v{b+5}
        v_cmp_lt_i32 vcc, 3, v{b+5}
        v_cndmask_b32 v{d+1}, 0, v{vX+4}, s[94:95]
        v_cndmask_b32 v{d+1}, v{d+1}, v{vX+5}, s[96:97]
        v_cndmask_b32 v{d+2}, 0, v{vX+4}, s[98:99]
        v_cndmask_b32 v{d+2}, v{d+2}, v{vX+5}, vcc
        v_cmp_lt_i32 s[94:95], 0, v{b+6}
        v_cmp_lt_i32 s[96:97], 1, v{b+6}
        v_cmp_lt_i32 s[98:99], 2, v{b+6}
        v_cmp_lt_i32 vcc, 3, v{b+6}
        v_cndmask_b32 v{vX+2}, 0, v{vX+6}, s[94:95]
        v_cndmask_b32 v{vX+2}, v{vX+2}, v{vX+7}, s[96:97]
        v_cndmask_b32 v{vX+3}, 0, v{vX+6}, s[98:99]
        v_cndmask_b32 v{vX+3}, v{vX+3}, v{vX+7}, vcc
        v_or_b32 v{d+1}, v{d+1}, v{vX+2}
        v_or_b32 v{d+2}, v{d+2}, v{vX+3}
        s_waitcnt lgkmcnt({1-r})
        v_lshlrev_b32 v{b+3}, 16, v{b+3}
        v_cmp_ne_u32 vcc, 0, v{d+1}
        v_add_u32 v{b+3}, s46, v{b+3}
        v_mov_b32 v{vX}, {OOB}
        v_cndmask_b32 v{d}, v{vX}, v{b+3}, vcc
        """)
    a(f"""
    s_sub_u32 s3, s{sN}, s{sSl}
    s_add_u32 s3, s3, 31
    s_ashr_i32 s3, s3, 5
    s_max_i32 s3, s3, 1
    s_lshl_b32 s39, s3, 5
    s_sub_u32 s39, s39, s{sN}
    s_mul_i32 s39, s39, {int(round(2 * phi * gain * SP / 4 / 128 * 2**24))}
    s_add_u32 s{sBase}, s{sBase}, s39
    s_add_u32 s3, s3, 3
    s_lshr_b32 s{sIt}, s3, 2
    s_mov_b32 s{sIdx}, 0
    s_lshl_b32 s{sAccL}, s{sJ}, 30
    s_mov_b32 s{sAccS}, s{sAccL}
    """)
    def fetch_off():
        a(f"""
        v_readlane_b32 s{sOff}, v{vD0}, s{sIdx}
        s_add_u32 s3, s{sIdx}, 1
        v_readlane_b32 s{sOff+1}, v{vD0}, s3
        s_add_u32 s3, s{sIdx}, 2
        v_readlane_b32 s{sOff+2}, v{vD0}, s3
        s_add_u32 s3, s{sIdx}, 3
        v_readlane_b32 s{sOff+3}, v{vD0}, s3
        """)
    def fetch_masks():
        for e in range(4):
            a(f"v_readlane_b32 s{sMask+2*e}, v{vD0+1}, s{sIdx}")
            a(f"v_readlane_b32 s{sMask+2*e+1}, v{vD0+2}, s{sIdx}")
            a(f"s_add_u32 s{sIdx}, s{sIdx}, 1")
    def next_off(tag):
        a(f"""
        s_cmp_lg_u32 s{sIdx}, 64
        s_cbranch_scc1 L_noswap{tag}
        v_mov_b32 v{vD0}, v{vD0+3}
        v_mov_b32 v{vD0+1}, v{vD0+4}
        v_mov_b32 v{vD0+2}, v{vD0+5}
        s_mov_b32 s{sIdx}, 0
        L_noswap{tag}:
        """)
        fetch_off()
    fetch_off()
    stamp(2)
    if sst: a("s_memrealtime s[88:89]")
    a(f"s_cmp_eq_u32 s47, 1\ns_nop 3\ns_cbranch_scc0 L_burst")
    hist_jump = list(a.hist)
    for x in range(P0, 16): load(x)
    fetch_masks()
    a("s_branch L_burst_qk")
    hist_jump2 = list(a.hist)
    def QK(e):
        d = vS + 4*e
        a(f"v_mfma_f32_16x16x32_bf16 v[{d}:{d+3}], v[{kslot(e,0)}:{kslot(e,0)+3}], v[{vQ}:{vQ+3}], 0")
        a(f"v_mfma_f32_16x16x32_bf16 v[{d}:{d+3}], v[{kslot(e,1)}:{kslot(e,1)+3}], v[{vQ+4}:{vQ+7}], v[{d}:{d+3}]")
    def RED(e):
        d = vS + 4*e
        a(f"""
        v_cndmask_b32 v{d}, v{d}, v{d+1}, s[{sModd}:{sModd+1}]
        v_cndmask_b32 v{d+2}, v{d+2}, v{d+3}, s[{sModd}:{sModd+1}]
        v_cndmask_b32 v{d}, v{d}, v{d+2}, s[{sMhi}:{sMhi+1}]
        v_add_f32_dpp v{d+1}, v{d}, v{d} row_ror:4 row_mask:0xf bank_mask:0xf
        v_add_f32_dpp v{d}, v{d+1}, v{d+1} row_ror:8 row_mask:0xf bank_mask:0xf
        v_cndmask_b32 v{d}, v{vNeg}, v{d}, s[{sMask+2*e}:{sMask+2*e+1}]
        """)
    def SM(wave_max):
        T = [vS + 4*e for e in range(4)]
        a(f"""
        v_max3_f32 v{vM}, v{vM}, v{T[0]}, v{T[1]}
        v_max3_f32 v{vM}, v{vM}, v{T[2]}, v{T[3]}
        """)
        if wave_max:
            a(f"""
            v_mov_b32 v{vX}, v{vM}
            v_permlane32_swap_b32 v{vM}, v{vX}
            v_max_f32 v{vM}, v{vM}, v{vX}
            v_mov_b32 v{vX}, v{vM}
            v_permlane16_swap_b32 v{vM}, v{vX}
            v_max_f32 v{vM}, v{vM}, v{vX}
            """)
        a(f"""
        v_mul_f32 v{vX}, s{sC}, v{vM}
        v_sub_f32 v{vAl}, v{vMC}, v{vX}
        v_fma_f32 v{T[0]}, v{T[0]}, s{sC}, -v{vX}
        v_fma_f32 v{T[1]}, v{T[1]}, s{sC}, -v{vX}
        v_fma_f32 v{T[2]}, v{T[2]}, s{sC}, -v{vX}
        v_fma_f32 v{T[3]}, v{T[3]}, s{sC}, -v{vX}
        v_exp_f32 v{vAl}, v{vAl}
        v_exp_f32 v{T[0]}, v{T[0]}
        v_exp_f32 v{T[1]}, v{T[1]}
        v_exp_f32 v{T[2]}, v{T[2]}
        v_exp_f32 v{T[3]}, v{T[3]}
        v_mov_b32 v{vMC}, v{vX}
        v_mov_b32_dpp v{vAq}, v{vAl} quad_perm:[0,0,0,0] row_mask:0xf bank_mask:0xf
        v_mov_b32_dpp v{vAq+1}, v{vAl} quad_perm:[1,1,1,1] row_mask:0xf bank_mask:0xf
        v_mov_b32_dpp v{vAq+2}, v{vAl} quad_perm:[2,2,2,2] row_mask:0xf bank_mask:0xf
        v_mov_b32_dpp v{vAq+3}, v{vAl} quad_perm:[3,3,3,3] row_mask:0xf bank_mask:0xf
        v_add_f32 v{vX}, v{T[0]}, v{T[1]}
        v_add_f32 v{vX+1}, v{T[2]}, v{T[3]}
        v_cvt_pk_bf16_f32 v{vP}, v{T[0]}, v{T[1]}
        v_cvt_pk_bf16_f32 v{vP+1}, v{T[2]}, v{T[3]}
        v_add_f32 v{vX}, v{vX}, v{vX+1}
        v_fma_f32 v{vL}, v{vL}, v{vAl}, v{vX}
        """)
    def RS(t0, t1):
        for t in range(t0, t1):
            r = vA + 4*t
            a(f"v_pk_mul_f32 v[{r}:{r+1}], v[{r}:{r+1}], v[{vAq}:{vAq+1}]")
            a(f"v_pk_mul_f32 v[{r+2}:{r+3}], v[{r+2}:{r+3}], v[{vAq+2}:{vAq+3}]")
    def PV(h, d0, d1):
        def perm(dd):
            t = vT + 2*(dd & 3); rr = dd >> 1; sel = sSelHi if dd & 1 else sSelLo
            a(f"v_perm_b32 v{t}, v{vslot(h,1)+rr}, v{vslot(h,0)+rr}, s{sel}")
            a(f"v_perm_b32 v{t+1}, v{vslot(h,3)+rr}, v{vslot(h,2)+rr}, s{sel}")
        def mm(dd):
            t = vT + 2*(dd & 3); r = vA + 4*(8*h + dd)
            a(f"v_mfma_f32_4x4x4_16b_bf16 v[{r}:{r+3}], v[{vP}:{vP+1}], v[{t}:{t+1}], v[{r}:{r+3}]")
        perm(d0)
        for dd in range(d0, d1):
            if dd + 1 < d1: perm(dd + 1)
            mm(dd)
    def FB(k=0):
        G = int(round(gain * SP / 4 / 128 * 2**24)); B0 = int(round((bias if k == 0 or bias2 is None else bias2) * 128))
        back = sum(1 for y in range(XPL + 1 - 8*k, 16 + 4 - 8*k) if (y % 16) % SP == SP - 1)
        a(f"""
        s_cmp_eq_u32 s{sFb}, 0
        s_mov_b32 s{sFb}, 1
        s_cbranch_scc1 L_nofb{k}
        """)
        if phys:
            a(f"""
            v_readfirstlane_b32 s3, v{vProg}
            s_mov_b32 s44, 0x00100010
            s_sub_u32 s3, {8 + back}, s3
            s_pack_ll_b32_b16 s3, s3, s3
            s_mov_b32 s45, 0x00040004
            v_pk_add_u16 v{vSib}, v{vSib}, s3
            v_pk_add_u16 v{vSib+1}, v{vSib+1}, s3
            s_mov_b32 s47, 0xfff8fff8
            v_pk_min_u16 v{vSib}, v{vSib}, s44
            v_pk_min_u16 v{vSib+1}, v{vSib+1}, s44
            v_pk_lshrrev_b16 v{vX}, s45, v{vSib}
            v_pk_lshrrev_b16 v{vX+1}, s45, v{vSib+1}
            v_pk_mad_u16 v{vSib}, v{vX}, s47, v{vSib}
            v_pk_mad_u16 v{vSib+1}, v{vX+1}, s47, v{vSib+1}
            v_pk_add_u16 v{vSib}, v{vSib}, v{vSib+1}
            s_mov_b32 s3, {B0 - 256*8}
            v_lshrrev_b32 v{vSib+1}, 16, v{vSib}
            v_and_b32 v{vSib}, 0xffff, v{vSib}
            v_add_u32 v{vSib}, v{vSib}, v{vSib+1}
            v_add_u32_dpp v{vSib}, v{vSib}, v{vSib} row_ror:1 row_mask:0xf bank_mask:0xf
            v_add_u32_dpp v{vSib}, v{vSib}, v{vSib} row_ror:2 row_mask:0xf bank_mask:0xf
            """)
        else:
            a(f"""
            v_add_u32 v{vSib}, v{vSib}, v{vSib+1}
            v_readfirstlane_b32 s3, v{vProg}
            v_add_u32_dpp v{vSib}, v{vSib}, v{vSib} row_ror:1 row_mask:0xf bank_mask:0xf
            s_sub_u32 s3, s3, {back}
            s_lshl_b32 s3, s3, 7
            v_add_u32_dpp v{vSib}, v{vSib}, v{vSib} row_ror:2 row_mask:0xf bank_mask:0xf
            s_sub_u32 s3, {B0}, s3
            """)
        a(f"""
        v_add_u32_dpp v{vSib}, v{vSib}, v{vSib} row_ror:4 row_mask:0xf bank_mask:0xf
        v_add_u32_dpp v{vSib}, v{vSib}, v{vSib} row_ror:8 row_mask:0xf bank_mask:0xf
        v_readlane_b32 s39, v{vSib}, 0
        v_readlane_b32 s44, v{vSib}, 16
        v_readlane_b32 s45, v{vSib}, 32
        v_readlane_b32 s47, v{vSib}, 48
        s_add_u32 s3, s3, s39
        s_add_u32 s44, s44, s45
        s_add_u32 s3, s3, s47
        s_add_u32 s3, s3, s44
        s_max_i32 s3, s3, -1024
        s_min_i32 s3, s3, 1024
        """)
        if dbg:
            a(f"s_add_u32 s30, s30, s3\ns_mul_i32 s39, s3, s3\ns_add_u32 s32, s32, s39")
        a(f"""
        s_mul_i32 s3, s3, {G}
        s_add_u32 s3, s3, s{sBase}
        s_min_i32 s3, s3, {int(umax * 2**24)}
        s_max_i32 s3, s3, {-int(umin * 2**24)}
        s_max_i32 s{sIncL}, s3, 0
        s_sub_u32 s3, 0, s3
        s_max_i32 s{sIncS}, s3, 0
        s_lshl_b32 s{sIncL}, s{sIncL}, 8
        s_lshl_b32 s{sIncS}, s{sIncS}, 8
        L_nofb{k}:
        """)
    def flag_store():
        a(f"""
        s_lshl_b32 s3, s{sHead}, 5
        s_add_u32 s3, s3, s{sSl}
        s_lshl_b32 s3, s3, 7
        v_lshlrev_b32 v{vTb}, 4, v1
        v_add_u32 v{vTb}, s3, v{vTb}
        v_mov_b32 v{vTb+4}, s{sTag}
        v_mov_b32 v{vTb+5}, s{sTag}
        v_mov_b32 v{vTb+6}, s{sTag}
        v_mov_b32 v{vTb+7}, s{sTag}
        s_cmp_eq_u32 s3, 0
        s_movk_i32 s3, 0xff
        s_cselect_b32 s3, s3, 0
        s_or_b32 exec_lo, s3, 0xff00
        s_mov_b32 exec_hi, 0
        global_store_dwordx4 v{vTb}, v[{vTb+4}:{vTb+7}], s[18:19] sc1
        s_mov_b64 exec, -1
        """)
    def TAGSM():
        a(f"""
        s_cmp_eq_u32 s{sSt}, 0
        s_cbranch_scc1 L_st_done
        s_cmp_eq_u32 s{sSt}, 4
        s_cbranch_scc1 L_st_load
        s_cmp_eq_u32 s{sSt}, 3
        s_cbranch_scc1 L_st_tag
        s_cmp_eq_u32 s{sSt}, 2
        s_cbranch_scc1 L_st_fl
        v_cmp_ne_u32 vcc, s{sTag}, v{vNo+1}
        s_cmp_eq_u64 vcc, 0
        s_cselect_b32 s{sSt}, 0, 2
        s_branch L_st_done
        L_st_fl:
        global_load_dword v{vNo+1}, v{vFl}, s[18:19] offset:128 sc1
        s_mov_b32 s{sSt}, 1
        s_branch L_st_done
        L_st_tag:
        v_readfirstlane_b32 s{sTag}, v{vNo}
        s_cmp_eq_u32 s{sTag}, 0
        s_cbranch_scc1 L_st_load
        """)
        flag_store()
        a(f"""
        s_cmp_lt_u32 s{sSl}, {32-C}
        s_cselect_b32 s{sSt}, 0, 2
        s_branch L_st_done
        L_st_load:
        v_mov_b32 v{vTb}, 0
        global_load_dword v{vNo}, v{vTb}, s[16:17] sc1
        s_mov_b32 s{sSt}, 3
        L_st_done:
        """)
    sched = {0: [fetch_masks], 1: [lambda: PV(0, 0, 4)], 2: [lambda: PV(0, 4, 8)], 3: [lambda: RS(8, 16)], 4: [FB],
             5: [lambda: PV(1, 0, 4)], 6: [lambda: PV(1, 4, 8)], 7: [lambda: QK(0), TAGSM], 8: [lambda: RED(0)], 9: [lambda: QK(1)],
             10: [lambda: RED(1)], 11: [lambda: QK(2)], 12: [lambda: RED(2)], 13: [lambda: QK(3), lambda: RED(3)],
             14: [lambda: SM(False)], 15: [lambda: RS(0, 8)]}
    if fb2: sched[12].append(lambda: FB(1))
    assert (XPL - 16) <= 4 - R
    a.raw(".p2align 6")
    a("L_loop:")
    for x in range(16):
        a(f"""
        s_add_u32 s{sAccL}, s{sAccL}, s{sIncL}
        s_cbranch_scc1 L_lax{x}
        s_add_u32 s{sAccS}, s{sAccS}, s{sIncS}
        s_cbranch_scc0 L_nrm{x}
        s_waitcnt vmcnt({cnt(x-(R-2), x)})
        L_nrm{x}:
        s_waitcnt vmcnt({cnt(x-(R-1), x)})
        L_lax{x}:
        s_waitcnt vmcnt({cnt(x-R, x)})
        """)
        load(x)
        if x == 15: next_off(0)
        for t in sched[x]: t()
    if sst:
        a(f"s_cmp_lg_u32 s{sIt}, 18\ns_cbranch_scc1 L_tr5\ns_memrealtime s[90:91]\nL_tr5:")
    if trace:
        for k, i in zip(trace, (1, 2, 4, 5)):
            a(f"s_cmp_lg_u32 s{sIt}, {k}\ns_cbranch_scc1 L_tr{i}\ns_memrealtime s[{STR[i]}:{STR[i]+1}]\nL_tr{i}:")
    a(f"s_sub_u32 s{sIt}, s{sIt}, 1\ns_cmp_gt_u32 s{sIt}, {B}\ns_cbranch_scc1 L_loop")
    a.check_backedge("L_loop")
    a("L_burst:")
    for x in range(8): load(x)
    fetch_masks()
    RS(8, 16)
    a(f"s_waitcnt vmcnt({cnt(11-16, 8)})")
    PV(0, 0, 8)
    for x in range(8, 12): load(x)
    a(f"s_waitcnt vmcnt({cnt(15-16, 12)})")
    PV(1, 0, 8)
    for x in range(12, 16): load(x)
    a("L_burst_qk:")
    for e in range(4):
        a(f"s_waitcnt vmcnt({cnt(2*e+1, 16)})")
        QK(e)
        if e: RED(e-1)
    RED(3); SM(True); RS(0, 8)
    a(f"s_sub_u32 s{sIt}, s{sIt}, 1\ns_cmp_eq_u32 s{sIt}, 0\ns_cbranch_scc1 L_drain")
    hist_d = list(a.hist)
    next_off(1)
    a(f"s_cmp_gt_u32 s{sIt}, {B}\ns_nop 1\ns_cbranch_scc1 L_loop")
    a.check_backedge("L_loop")
    a("s_branch L_burst")
    a.check_backedge("L_burst")
    a.check_jump("L_burst", hist_jump)
    a.check_jump("L_burst_qk", hist_jump2)
    a("L_drain:")
    a.hist = hist_d
    x0, x1 = vX, vX+1
    vCo, vCm, vOut, vCw = vTb+8, vTb+12, vTb+13, vTb+14
    RS(8, 16)
    lgC = 6 if pbf16 else 7
    a(f"""
    v_mov_b32 v{x1}, v{vL}
    v_lshrrev_b32 v{vX+2}, 4, v1
    v_and_b32 v{vX+3}, 15, v1
    v_permlane32_swap_b32 v{vL}, v{x1}
    v_lshlrev_b32 v{vX+2}, 3, v{vX+2}
    v_add_f32 v{vL}, v{vL}, v{x1}
    v_lshl_add_u32 v{vX+2}, v{vX+3}, 5, v{vX+2}
    v_mov_b32 v{x1}, v{vL}
    s_lshl_b32 s3, s{sJ}, 12
    v_add_u32 v{vX+2}, s3, v{vX+2}
    v_permlane16_swap_b32 v{vL}, v{x1}
    s_lshl_b32 s3, s{sJ}, 2
    v_add_f32 v{vL}, v{vL}, v{x1}
    v_lshlrev_b32 v{x1}, 4, v1
    v_add_u32 v{vX+3}, s3, v{x1}
    s_mov_b64 exec, 0xf
    ds_write_b32 v{vX+3}, v{vMC} offset:{LDS_M}
    ds_write_b32 v{vX+3}, v{vL} offset:{LDS_L}
    s_mov_b64 exec, -1
    s_lshl_b32 s3, s{sJ}, 4
    v_mov_b32 v{vX+4}, s3
    s_lshl_b32 s3, s{sJ}, 10
    v_add_u32 v{vX+5}, s3, v{x1}
    s_and_b32 s3, s{sSl}, 7
    s_lshl_b32 s3, s3, 2
    s_add_u32 s3, s3, s{sJ}
    s_lshr_b32 s44, s3, 3
    s_and_b32 s45, s3, 7
    s_lshl_b32 s39, s{sHead}, 2
    s_add_u32 s39, s39, s44
    v_lshrrev_b32 v{vX+6}, 3, v1
    v_and_b32 v{vX+7}, 7, v1
    v_lshlrev_b32 v{vCo}, {lgRB}, v{vX+6}
    v_lshl_add_u32 v{vCo}, v{vX+7}, {lgC-3}, v{vCo}
    s_lshl_b32 s3, s39, {lgRB+5}
    s_lshl_b32 s46, s45, {lgC}
    s_add_u32 s3, s3, s46
    s_add_u32 s3, s3, {DA_OFF}
    v_add_u32 v{vCo}, s3, v{vCo}
    s_lshl_b32 s3, s39, 12
    s_add_u32 s3, s3, {ML_OFF}
    v_lshlrev_b32 v{vCm}, 7, v{vX+6}
    v_add_u32 v{vCm}, s3, v{vCm}
    v_and_b32 v{vCw}, 31, v1
    v_lshlrev_b32 v{vCw}, 7, v{vCw}
    v_add_u32 v{vCw}, s3, v{vCw}
    v_add_u32 v{vCo+1}, {8*RB}, v{vCo}
    v_add_u32 v{vCo+2}, {16*RB}, v{vCo}
    v_add_u32 v{vCo+3}, {24*RB}, v{vCo}
    s_lshr_b32 s3, s44, 1
    s_lshl_b32 s3, s3, 13
    s_lshl_b32 s46, s{sHead}, 10
    s_add_u32 s3, s3, s46
    s_and_b32 s46, s44, 1
    s_lshl_b32 s46, s46, 9
    s_add_u32 s3, s3, s46
    s_lshl_b32 s46, s45, 6
    s_add_u32 s3, s3, s46
    v_lshrrev_b32 v{vOut}, 4, v1
    v_lshlrev_b32 v{vOut}, 1, v{vOut}
    v_lshl_add_u32 v{vOut}, v{vX+7}, 3, v{vOut}
    v_add_u32 v{vOut}, s3, v{vOut}
    s_mov_b32 s{sFb}, 0
    """)
    if dry:
        a(f"""
        s_cmp_lt_u32 s{sSl}, {32-C}
        s_cbranch_scc1 L_dry_done
        s_mov_b32 s{sFb}, 1
        s_mov_b64 s[56:57], 0
        s_mov_b64 s[58:59], 0
        s_mov_b64 s[60:61], 0
        s_mov_b64 s[62:63], 0
        s_branch L_poll
        L_dry_done:
        """)
    a(f"""
    s_mov_b64 s[56:57], -1
    s_mov_b64 s[58:59], -1
    s_mov_b64 s[60:61], -1
    s_mov_b64 s[62:63], -1
    s_waitcnt vmcnt({cnt(11, 16)})
    """)
    vW = vK
    def REDUCE(h):
        X = lambda dd, q: vA + 4*(8*h + dd) + q
        for dd in range(4):
            for q in range(4): a(f"v_permlane32_swap_b32 v{X(dd,q)}, v{X(dd+4,q)}")
        for dd in range(4):
            for q in (0, 2): a(f"v_pk_add_f32 v[{X(dd,q)}:{X(dd,q)+1}], v[{X(dd,q)}:{X(dd,q)+1}], v[{X(dd+4,q)}:{X(dd+4,q)+1}]")
        for dd in range(2):
            for q in range(4): a(f"v_permlane16_swap_b32 v{X(dd,q)}, v{X(dd+2,q)}")
        for q in range(4):
            w = vW + 8*h + 2*q
            a(f"v_add_f32 v{w}, v{X(0,q)}, v{X(2,q)}\nv_add_f32 v{w+1}, v{X(1,q)}, v{X(3,q)}")
            a(f"ds_write_b64 v{vX+2}, v[{w}:{w+1}] offset:{LDS_O + q*1024 + h*512}")
    PV(0, 0, 8)
    REDUCE(0)
    a("s_waitcnt vmcnt(0)")
    PV(1, 0, 8)
    stamp(3)
    REDUCE(1)
    a(f"""
    s_cmp_eq_u32 s{sSt}, 0
    s_cbranch_scc1 L_chk_ok
    s_cmp_lt_u32 s{sSt}, 3
    s_cbranch_scc1 L_chk
    s_mov_b32 s52, s54
    s_mov_b32 s53, 0
    s_waitcnt lgkmcnt(0)
    s_atomic_cmpswap s[52:53], s[16:17], 0x0 glc
    s_waitcnt lgkmcnt(0)
    s_cmp_eq_u32 s52, 0
    s_cselect_b32 s{sTag}, s54, s52
    """)
    flag_store()
    a(f"""
    s_cmp_lt_u32 s{sSl}, {32-C}
    s_cbranch_scc1 L_chk_ok
    L_chk:
    global_load_dword v{vNo+1}, v{vFl}, s[18:19] offset:128 sc1
    s_waitcnt vmcnt(0)
    v_cmp_ne_u32 vcc, s{sTag}, v{vNo+1}
    s_cbranch_vccnz L_chk
    L_chk_ok:
    s_waitcnt lgkmcnt(0)
    """)
    stamp(4)
    a(f"""
    s_barrier
    ds_read_b128 v[{vS}:{vS+3}], v{vX+4} offset:{LDS_M}
    ds_read_b128 v[{vS+4}:{vS+7}], v{vX+4} offset:{LDS_L}
    """)
    for w in range(4):
        a(f"ds_read_b128 v[{vV+4*w}:{vV+4*w+3}], v{vX+5} offset:{LDS_O + w*4096}")
    if stamps: a("s_waitcnt lgkmcnt(0)")
    a(f"""
    s_waitcnt lgkmcnt(4)
    v_max_f32 v{vM}, v{vS}, v{vS+1}
    v_max3_f32 v{vM}, v{vM}, v{vS+2}, v{vS+3}
    """)
    for w in range(4): a(f"v_sub_f32 v{vS+w}, v{vS+w}, v{vM}")
    for w in range(4): a(f"v_exp_f32 v{vS+w}, v{vS+w}")
    a(f"s_waitcnt lgkmcnt(3)")
    for t in (0, 2): a(f"v_pk_mul_f32 v[{vW+t}:{vW+t+1}], v[{vV+t}:{vV+t+1}], v[{vS}:{vS+1}] op_sel_hi:[1,0]")
    for w in range(1, 4):
        a(f"s_waitcnt lgkmcnt({3-w})")
        for t in range(4): a(f"v_fmac_f32 v{vW+t}, v{vS+w}, v{vV+4*w+t}")
    if pbf16:
        a(f"""
        v_cvt_pk_bf16_f32 v{vW}, v{vW}, v{vW+1}
        v_cvt_pk_bf16_f32 v{vW+1}, v{vW+2}, v{vW+3}
        v_min_u32 v{vW}, -2, v{vW}
        v_min_u32 v{vW+1}, -2, v{vW+1}
        global_store_dwordx2 v{vPo}, v[{vW}:{vW+1}], s[18:19] sc1
        """)
    else:
        for t in range(4): a(f"v_min_u32 v{vW+t}, -2, v{vW+t}")
        a(f"global_store_dwordx4 v{vPo}, v[{vW}:{vW+3}], s[18:19] {ppol}")
    a(f"v_mul_f32 v{vM+1}, v{vS}, v{vS+4}")
    for w in range(1, 4): a(f"v_fmac_f32 v{vM+1}, v{vS+w}, v{vS+4+w}")
    a(f"""
    v_min_u32 v{vM}, -2, v{vM}
    v_min_u32 v{vM+1}, -2, v{vM+1}
    v_mov_b32 v{vM+2}, v{vM}
    v_mov_b32 v{vM+3}, v{vM+1}
    s_mov_b64 exec, 0xff
    global_store_dwordx4 v{vPm}, v[{vM}:{vM+3}], s[18:19] {ppol}
    """)
    stamp(5)
    a(f"""
    s_cmp_lt_u32 s{sSl}, {32-C}
    s_cbranch_scc1 L_fin
    L_poll:
    """)
    vO, vML = vV, vV+16
    a.lines.pop()
    def poll_round():
        for i in range(4):
            a(f"s_mov_b64 exec, s[{56+2*i}:{57+2*i}]")
            if PD == 1: a(f"s_cbranch_execz L_skip{i}")
            if pbf16: a(f"global_load_dwordx2 v[{vO+4*i}:{vO+4*i+1}], v{vCo+i}, s[18:19] sc1")
            else: a(f"global_load_dwordx4 v[{vO+4*i}:{vO+4*i+3}], v{vCo+i}, s[18:19] sc1")
            a(f"global_load_dwordx2 v[{vML+2*i}:{vML+2*i+1}], v{vCm}, s[18:19] offset:{1024*i} sc1")
            if PD == 1: a(f"L_skip{i}:")
    if mlfirst:
        a(f"""
        s_mov_b32 exec_lo, -1
        s_mov_b32 exec_hi, 0
        L_pml:
        global_load_dword v{vML}, v{vCw}, s[18:19] sc1
        s_waitcnt vmcnt(0)
        v_cmp_eq_u32 vcc, -1, v{vML}
        s_and_b64 exec, exec, vcc
        s_bcnt1_i32_b64 s3, exec
        s_cmp_gt_u32 s3, {mlk}
        s_cbranch_scc1 L_pml
        """)
    for k in range(PD - 1):
        poll_round()
        a(f"s_sleep {psl}")
    a("L_poll:")
    poll_round()
    if dry:
        a(f"s_mov_b64 exec, -1\ns_cmp_eq_u32 s{sFb}, 1\ns_cbranch_scc1 L_nowait\ns_waitcnt vmcnt(0)\nL_nowait:")
    else:
        a(f"s_mov_b64 exec, -1\ns_waitcnt vmcnt({8*(PD-1)})")
    for i in range(4):
        if pbf16:
            a(f"""
            v_max3_u32 v{vT+2}, v{vO+4*i}, v{vO+4*i+1}, v{vML+2*i}
            v_max_u32 v{vT+2}, v{vT+2}, v{vML+2*i+1}
            """)
        else:
            a(f"""
            v_max3_u32 v{vT+2}, v{vO+4*i}, v{vO+4*i+1}, v{vO+4*i+2}
            v_max3_u32 v{vT+3}, v{vO+4*i+3}, v{vML+2*i}, v{vML+2*i+1}
            v_max_u32 v{vT+2}, v{vT+2}, v{vT+3}
            """)
        a(f"v_cmp_eq_u32 s[{56+2*i}:{57+2*i}], -1, v{vT+2}")
    a(f"""
    s_or_b64 s[64:65], s[56:57], s[58:59]
    s_or_b64 s[66:67], s[60:61], s[62:63]
    s_or_b64 s[64:65], s[64:65], s[66:67]
    """)
    if dry:
        a(f"s_cselect_b32 s3, 1, 0\ns_cmp_gt_u32 s3, s{sFb}")
    if psleep:
        a(f"s_cbranch_scc0 L_poll_done\ns_sleep {psleep}\ns_branch L_poll\nL_poll_done:")
    else:
        a("s_cbranch_scc1 L_poll")
    a.check_backedge("L_poll")
    if stamps and dry: a(f's_cmp_eq_u32 s{sFb}, 1\ns_cbranch_scc1 L_nost6')
    stamp(6)
    if stamps and dry: a('L_nost6:')
    m = vT; t = vT+1; vF = vS; vR = vS+4; vU = vK+16
    a(f"""
    v_max_f32 v{m}, v{vML}, v{vML+2}
    v_max3_f32 v{m}, v{m}, v{vML+4}, v{vML+6}
    """)
    if pbf16:
        for i in range(4):
            o = vO + 4*i; u = vU + 4*i
            a(f"""
            v_and_b32 v{u+3}, 0xffff0000, v{o+1}
            v_lshlrev_b32 v{u+2}, 16, v{o+1}
            v_and_b32 v{u+1}, 0xffff0000, v{o}
            v_lshlrev_b32 v{u}, 16, v{o}
            """)
    src = vU if pbf16 else vO
    a(f"""
    v_max_f32_dpp v{m}, v{m}, v{m} row_ror:8 row_mask:0xf bank_mask:0xf
    v_mov_b32 v{t}, v{m}
    v_permlane16_swap_b32 v{m}, v{t}
    v_max_f32 v{m}, v{m}, v{t}
    v_mov_b32 v{t}, v{m}
    v_permlane32_swap_b32 v{m}, v{t}
    v_max_f32 v{m}, v{m}, v{t}
    """)
    for i in range(4): a(f"v_sub_f32 v{vF+i}, v{vML+2*i}, v{m}")
    for i in range(4): a(f"v_exp_f32 v{vF+i}, v{vF+i}")
    a(f"v_mul_f32 v{m}, v{vF}, v{vML+1}")
    for k in (0, 2): a(f"v_pk_mul_f32 v[{vR+k}:{vR+k+1}], v[{src+k}:{src+k+1}], v[{vF}:{vF+1}] op_sel_hi:[1,0]")
    for i in range(1, 4):
        a(f"v_fmac_f32 v{m}, v{vF+i}, v{vML+2*i+1}")
        for k in range(4): a(f"v_fmac_f32 v{vR+k}, v{vF+i}, v{src+4*i+k}")
    a(f"""
    v_mov_b32 v{t}, v{m}
    v_permlane32_swap_b32 v{vR}, v{vR+2}
    v_permlane32_swap_b32 v{vR+1}, v{vR+3}
    v_permlane32_swap_b32 v{m}, v{t}
    v_add_f32 v{vR}, v{vR}, v{vR+2}
    v_add_f32 v{vR+1}, v{vR+1}, v{vR+3}
    v_add_f32 v{m}, v{m}, v{t}
    v_mov_b32 v{t}, v{m}
    v_permlane16_swap_b32 v{vR}, v{vR+1}
    v_permlane16_swap_b32 v{m}, v{t}
    v_add_f32 v{vR}, v{vR}, v{vR+1}
    v_add_f32 v{m}, v{m}, v{t}
    v_add_f32_dpp v{vR}, v{vR}, v{vR} row_ror:8 row_mask:0xf bank_mask:0xf
    v_add_f32_dpp v{m}, v{m}, v{m} row_ror:8 row_mask:0xf bank_mask:0xf
    v_rcp_f32 v{m}, v{m}
    s_mov_b32 exec_lo, 0x00ff00ff
    s_mov_b32 exec_hi, 0x00ff00ff
    v_mul_f32 v{vR}, v{vR}, v{m}
    v_cvt_pk_bf16_f32 v{vR}, v{vR}, v{vR}
    """)
    if dry:
        a(f"""
        s_cmp_eq_u32 s{sFb}, 0
        s_cbranch_scc1 L_store
        s_mov_b32 s{sFb}, 0
        s_mov_b64 exec, -1
        s_branch L_dry_done
        L_store:
        """)
    a(f"""
    global_store_short v{vOut}, v{vR}, s[14:15] {opol}
    L_fin:
    """)
    if stamps and PD > 1: a("s_waitcnt vmcnt(0)")
    if stamps:
        a(f"""
        s_mov_b64 exec, -1
        s_cmp_lt_u32 s{sSl}, {32-C}
        s_cbranch_scc0 L_st1
        s_memrealtime s[100:101]
        L_st1:
        s_getreg_b32 s98, hwreg(HW_REG_XCC_ID)
        s_getreg_b32 s99, hwreg(HW_REG_HW_ID)
        s_lshl_b32 s3, s2, 2
        s_add_u32 s3, s3, s{sJ}
        s_lshl_b32 s3, s3, 6
        s_add_u32 s3, s3, 0x20000000
        v_mov_b32 v{x0}, s3
        s_waitcnt lgkmcnt(0)
        """)
        for i in range(7):
            a(f"v_mov_b32 v{vV+2*i}, s{STR[i]}\nv_mov_b32 v{vV+2*i+1}, s{STR[i]+1}")
        a(f"v_mov_b32 v{vV+14}, s98\nv_mov_b32 v{vV+15}, s99\ns_mov_b64 exec, 1")
        for i in range(4):
            a(f"global_store_dwordx4 v{x0}, v[{vV+4*i}:{vV+4*i+3}], s[18:19] offset:{16*i}")
    a("L_end:\ns_endpgm")
    if diag:
        from diag import diag_kernel
        diag_kernel(a, 1024, **diag)
    def kd(name, nv, ns):
        a.raw(f""".amdhsa_kernel {name}
  .amdhsa_next_free_vgpr {nv}
  .amdhsa_next_free_sgpr {ns}
  .amdhsa_accum_offset {min(256,(nv+3)//4*4)}
  .amdhsa_group_segment_fixed_size 0
  .amdhsa_kernarg_size 64
  .amdhsa_user_sgpr_count 2
  .amdhsa_user_sgpr_kernarg_segment_ptr 1
  .amdhsa_system_sgpr_workgroup_id_x 1
  .amdhsa_float_denorm_mode_32 3
.end_amdhsa_kernel""")
    a.raw('.section .rodata,"a"\n.p2align 6')
    kd(KNAME, nvg, 102)
    if diag:
        a.raw(".p2align 6")
        kd("diag_kernel", 64, 32)
    return a.text()

if __name__ == "__main__":
    out = sys.argv[1]
    kw = eval("dict(" + (sys.argv[2] if len(sys.argv) > 2 else "") + ")")
    open(out, "w").write(gen(**kw))
```

```python
import sys, math, struct
from asmlib import Asm
KNAME = "standalone__paged_block_table_kv_radixattention__decode_kernel"
HDR = open("standalone__paged_block_table_kv_radixattention__decode.s.ref").read().split("; Override launch")[0]
C_SCALE = 0x3db8aa3b

vKo, vVo = 2, 3
vQ = 4
vD0 = 12
vM, vMC, vL, vAl = 18, 19, 20, 21
vAq = 22
vP = 26
vS = 28
vT = 44
vK = 52
vV = 84
vA = 116
vNeg = 180
vPo, vPm, vFl = 181, 182, 183
vX = 184
vTb = 192
vNo = 208
vPrA, vProg, vPrL, vSib = 210, 211, 212, 214
NVG = 216
sJ, sHead, sSl = 36, 37, 38
sBase = 43
sOff = 48
sIncL = 55
sMask = 56
sAccS, sAccL, sIncS, sTag = 68, 69, 70, 71
sIdx, sIt = 72, 73
sModd, sMhi = 74, 76
sSelLo, sSelHi, sC = 78, 79, 80
sN, sS, sNb0, sNb1, sC0, sC1 = 81, 82, 83, 84, 85, 86
sSt, sFb = 87, 42
OOB = 0xF0000000
PR_OFF, ML_OFF, DA_OFF = 0x9000, 0x10000, 0x40000
LDS_S, LDS_M, LDS_L, LDS_O = 16384, 16448, 16512, 20480
R = 6

DOC = r'''
; ---------------------------------------------------------------------------------------------------------------
;
; ---------------------------------------------------------------------------------------------------------------'''

def kslot(e, h): return vK + (2*e + h)*4
def vslot(h, e): return vV + (4*h + e)*4

def gen(pol="nt", stamps=False, lds=98304, diag=None, P0=8, B=1, blk=True, trace=None, nvg=NVG,
        xcc=(0.9, 0, 0.8, 0.0, 1.2, 0.1, 1.35, 0.25), base=1.6, sens=8.0,
        gain=0.25, bias=-0.2, umax=0.75, umin=0.75, SP=8, XPL=13, dbg=False, pbf16=False, remap=False, PD=1, psl=4, opol='', prpol='', ppol='sc1', fb2=False, bias2=None, G=1, cu=0.08, he=0.45, w0=0.15, xclear=0, phys=True, psleep=0, mlfirst=True, mlk=8, phi=0.2, echk=True, cons=0.4, cpf=3, sst=False, dry=False, late=False, mid=(0, 0), spec=False):
    a = Asm()
    C = 8
    STR = [28, 30, 32, 34, 88, 90, 100]
    def stamp(i):
        if (trace or sst) and i in (1, 2, 4, 5): return
        if dbg and i in (1, 2):
            a(f"s_mov_b64 s[{STR[i]}:{STR[i]+1}], 0"); return
        if stamps: a(f"s_memrealtime s[{STR[i]}:{STR[i]+1}]")
    def load(x):
        if x < 8:
            e, h = x >> 1, x & 1
            r = kslot(e, h)
            a(f"buffer_load_dwordx4 v[{r}:{r+3}], v{vKo}, s[20:23], s{sOff+e} offen offset:{h*256} {pol}")
        else:
            h, e = (x - 8) >> 2, (x - 8) & 3
            r = vslot(h, e)
            a(f"buffer_load_dwordx4 v[{r}:{r+3}], v{vVo}, s[24:27], s{sOff+e} offen offset:{h*256} {pol}")
        if x % SP == SP - 1:
            a(f"""
            v_add_u32 v{vProg}, 1, v{vProg}
            s_mov_b64 exec, 1
            global_store_{'short' if phys else 'dword'} v{vPrA}, v{vProg}, s[18:19] {prpol}
            s_mov_b64 exec, -1
            """)
        if x == XPL or (fb2 and x == XPL - 8):
            a(f"global_load_dwordx2 v[{vSib}:{vSib+1}], v{vPrL}, s[18:19] nt")
    def extra(y):
        y %= 16
        return (1 if y % SP == SP - 1 else 0) + (1 if (y == XPL or (fb2 and y == XPL - 8)) else 0)
    def cnt(target, now):
        return sum((1 if y > target else 0) + extra(y) for y in range(target, now))

    a.raw(HDR.rstrip("\n"))
    if diag:
        a.raw(f"; @launch kernel={KNAME} grid=(256,1,1) block=(256,1,1) lds={lds}")
        a.raw("; @launch kernel=diag_kernel grid=(1,1,1) block=(64,1,1) lds=0")
    else:
        a.raw(f"; @launch grid=(256,1,1) block=(256,1,1) lds={lds}")
    a.raw(DOC.strip("\n"))
    a.raw('.amdgcn_target "amdgcn-amd-amdhsa--gfx950"\n.text')
    a.raw(f".globl {KNAME}\n.p2align 8\n.type {KNAME},@function\n{KNAME}:")
    stamp(0)
    a("s_load_dwordx16 s[4:19], s[0:1], 0")
    if cpf == 1:
        a(f"""
        s_getpc_b64 s[92:93]
        v_lshlrev_b32 v{vNo+1}, 7, v0
        v_and_b32 v{vNo+1}, 0x1fff, v{vNo+1}
        global_load_dword v{vNo}, v{vNo+1}, s[92:93]
        """)
    if cpf == 3:
        a(f"""
        s_getpc_b64 s[92:93]
        L_pc:
        v_lshlrev_b32 v{vNo+1}, 7, v0
        v_cmp_gt_u32 vcc, ((L_end-L_pc)>>7)+1, v0
        s_and_saveexec_b64 s[94:95], vcc
        s_cbranch_execz L_nopf
        global_load_dword v{vNo}, v{vNo+1}, s[92:93]
        L_nopf:
        s_mov_b64 exec, -1
        """)
    if cpf == 2:
        a(f"""
        s_getpc_b64 s[92:93]
        v_lshlrev_b32 v{vNo+1}, 7, v0
        v_cmp_gt_u32 vcc, 64, v0
        s_and_saveexec_b64 s[94:95], vcc
        s_cbranch_execz L_nopf
        global_load_dword v{vNo}, v{vNo+1}, s[92:93]
        L_nopf:
        s_mov_b64 exec, -1
        """)
    a(f"""
    s_cmp_ge_u32 s2, 256
    s_cbranch_scc1 L_end
    v_lshrrev_b32 v{vX}, 6, v0
    v_and_b32 v1, 63, v0
    s_lshr_b32 s{sHead}, s2, 3
    v_readfirstlane_b32 s{sJ}, v{vX}
    s_and_b32 s{sHead}, s{sHead}, 7
    """)
    if remap:
        a(f"""
        s_bfe_u32 s{sSl}, s2, 0x20001
        s_lshr_b32 s3, s2, 6
        s_lshl_b32 s3, s3, 2
        s_add_u32 s{sSl}, s{sSl}, s3
        s_andn2_b32 s3, 1, s2
        s_lshl_b32 s3, s3, 4
        s_add_u32 s{sSl}, s{sSl}, s3
        """)
    else:
        a(f"""
        s_and_b32 s{sSl}, s2, 7
        s_lshr_b32 s3, s2, 6
        s_lshl_b32 s3, s3, 3
        s_add_u32 s{sSl}, s{sSl}, s3
        """)
    a(f"""
    s_lshl_b32 s39, s{sHead}, 9
    v_lshrrev_b32 v{vX}, 4, v1
    v_bfe_u32 v{vX+1}, v1, 2, 2
    v_and_b32 v{vX+2}, 3, v1
    v_lshlrev_b32 v{vX+3}, 6, v{vX}
    v_lshl_add_u32 v{vKo}, v{vX+1}, 12, v{vX+3}
    v_lshl_add_u32 v{vKo}, v{vX+2}, 4, v{vKo}
    v_add_u32 v{vKo}, s39, v{vKo}
    v_and_b32 v{vX+4}, 15, v1
    v_lshlrev_b32 v{vVo}, 12, v{vX}
    v_lshl_add_u32 v{vVo}, v{vX+4}, 4, v{vVo}
    v_add_u32 v{vVo}, s39, v{vVo}
    v_lshl_add_u32 v{vX+5}, v{vX+1}, 4, v{vX+3}
    v_lshrrev_b32 v{vX+6}, 1, v{vX+2}
    v_lshl_add_u32 v{vX+5}, v{vX+6}, 13, v{vX+5}
    v_and_b32 v{vX+6}, 1, v1
    v_lshl_add_u32 v{vX+5}, v{vX+6}, 9, v{vX+5}
    s_lshl_b32 s39, s39, 1
    v_add_u32 v{vX+5}, s39, v{vX+5}
    v_lshlrev_b32 v{vX+6}, 5, v0
    v_add_u32 v{vX+7}, 0x2000, v{vX+6}
    s_lshl_b32 s3, s{sSl}, {4 if blk else 2}
    s_mov_b32 s22, 201326592
    s_mov_b32 s23, 0x20000
    s_mov_b32 s26, 201326592
    s_mov_b32 s27, 0x20000
    s_waitcnt lgkmcnt(0)
    {"s_memrealtime s[30:31]" if sst else ""}
    s_load_dwordx2 s[40:41], s[12:13], 0
    s_add_u32 s44, s10, s3
    s_addc_u32 s45, s11, 0
    """)
    if spec:
        pass
    elif blk:
        a(f"s_load_dwordx4 s[{sOff}:{sOff+3}], s[44:45], 0")
    else:
        for e in range(4): a(f"s_load_dword s{sOff+e}, s[44:45], {128*e}")
    RB = 512 if pbf16 else 1024
    lgRB = 9 if pbf16 else 10
    a(f"""
    s_load_dword s53, s[18:19], 0
    global_load_dwordx4 v[{vTb}:{vTb+3}], v{vX+6}, s[10:11]
    global_load_dwordx4 v[{vTb+4}:{vTb+7}], v{vX+6}, s[10:11] offset:16
    global_load_dwordx4 v[{vTb+8}:{vTb+11}], v{vX+7}, s[10:11]
    global_load_dwordx4 v[{vTb+12}:{vTb+15}], v{vX+7}, s[10:11] offset:16
    global_load_dwordx4 v[{vQ}:{vQ+3}], v{vX+5}, s[4:5]
    global_load_dwordx4 v[{vQ+4}:{vQ+7}], v{vX+5}, s[4:5] offset:256
    s_mov_b32 s20, s6
    s_and_b32 s21, s7, 0xffff
    s_mov_b32 s24, s8
    s_and_b32 s25, s9, 0xffff
    """)
    def PUB():
        a(f"""
        s_lshl_b32 s3, s{sHead}, 2
        s_add_u32 s3, s3, s{sJ}
        s_lshl_b32 s3, s3, 5
        s_add_u32 s3, s3, s{sSl}
        s_lshl_b32 s39, s3, {lgRB}
        s_add_u32 s39, s39, {DA_OFF}
        v_lshlrev_b32 v{vPo}, {3 if pbf16 else 4}, v1
        v_add_u32 v{vPo}, s39, v{vPo}
        s_lshl_b32 s39, s3, 7
        s_add_u32 s39, s39, {ML_OFF}
        v_lshlrev_b32 v{vPm}, 4, v1
        v_add_u32 v{vPm}, s39, v{vPm}
        s_cmp_lg_u32 s{sJ}, 0
        s_cbranch_scc1 L_noclear
        v_mov_b64 v[{vS}:{vS+1}], -1
        v_mov_b64 v[{vS+2}:{vS+3}], -1
        v_add_u32 v{vS+4}, {32*RB}, v{vPo}
        v_add_u32 v{vS+5}, {64*RB}, v{vPo}
        v_add_u32 v{vS+6}, {96*RB}, v{vPo}
        v_lshrrev_b32 v{vS+7}, 3, v1
        v_mul_u32_u24 v{vS+7}, {4096-128}, v{vS+7}
        v_add_u32 v{vS+7}, v{vS+7}, v{vPm}
        """)
        for r in (vPo, vS+4, vS+5, vS+6):
            if pbf16: a(f"global_store_dwordx2 v{r}, v[{vS}:{vS+1}], s[18:19] sc1")
            else: a(f"global_store_dwordx4 v{r}, v[{vS}:{vS+3}], s[18:19] sc1")
        for k in range(xclear):
            for r in (vPo, vS+4, vS+5, vS+6):
                a(f"v_add_u32 v{vS+8}, {0x200000*(k+1)}, v{r}\nglobal_store_dwordx4 v{vS+8}, v[{vS}:{vS+3}], s[18:19] sc1")
        a(f"""
        s_mov_b32 exec_hi, 0
        global_store_dwordx4 v{vS+7}, v[{vS}:{vS+3}], s[18:19] sc1
        s_mov_b64 exec, -1
        L_noclear:
        """)
    if not late: PUB()
    a(f"""
    s_lshl_b32 s46, s{sJ}, 14
    """)
    if phys:
        a(f"""
        s_getreg_b32 s3, hwreg(HW_REG_XCC_ID, 0, 3)
        s_lshl_b32 s3, s3, 9
        s_add_u32 s3, s3, {PR_OFF}
        v_lshlrev_b32 v{vPrL}, 3, v1
        v_add_u32 v{vPrL}, s3, v{vPrL}
        s_getreg_b32 s39, hwreg(HW_REG_HW_ID, 13, 2)
        s_lshl_b32 s39, s39, 7
        s_add_u32 s3, s3, s39
        s_getreg_b32 s39, hwreg(HW_REG_HW_ID, 8, 4)
        s_lshl_b32 s39, s39, 3
        s_add_u32 s3, s3, s39
        s_lshl_b32 s39, s{sJ}, 1
        s_add_u32 s3, s3, s39
        v_mov_b32 v{vPrA}, s3
        v_mov_b32 v{vProg}, 0x5a00
        """)
    else:
        a(f"""
        s_and_b32 s3, s2, 7
        s_lshl_b32 s3, s3, 9
        s_add_u32 s3, s3, {PR_OFF}
        v_lshlrev_b32 v{vPrL}, 3, v1
        v_add_u32 v{vPrL}, s3, v{vPrL}
        s_lshr_b32 s39, s2, 3
        s_lshl_b32 s39, s39, 2
        s_add_u32 s39, s39, s{sJ}
        s_lshl_b32 s39, s39, 2
        s_add_u32 s3, s3, s39
        v_mov_b32 v{vPrA}, s3
        v_mov_b32 v{vProg}, 0
        """)
    if not spec:
        a(f"""
        s_waitcnt lgkmcnt(0)
        """)
        for e in range(4):
            a(f"s_lshl_b32 s{sOff+e}, s{sOff+e}, 16\ns_add_u32 s{sOff+e}, s{sOff+e}, s46")
        a(f"""
        s_cmp_le_i32 s40, 0
        s_cselect_b32 s{sC0}, 0x8000, s40
        s_cmp_gt_u32 s{sC0}, 2047
        s_cselect_b32 s47, 1, 0
        s_cbranch_scc0 L_noearly
        """)
        if sst: a("s_memrealtime s[32:33]")
        for x in range(P0): load(x)
        YOUNG = cnt(-1, P0) - extra(-1)
        a("s_branch L_early_done\nL_noearly:")
        for i in range(0, 32, 2): a(f"v_mov_b64 v[{vV+i}:{vV+i+1}], 0")
        a("s_waitcnt vmcnt(0)\nL_early_done:")
        if late: PUB()
    else:
        assert blk and not late
        a(f"""
        s_lshl_b32 s3, s{sSl}, 18
        s_add_u32 s{sOff}, s3, s46
        s_add_u32 s{sOff+1}, s{sOff}, 0x10000
        s_add_u32 s{sOff+2}, s{sOff}, 0x20000
        s_add_u32 s{sOff+3}, s{sOff}, 0x30000
        s_mov_b32 s47, 1
        """)
        if sst: a("s_memrealtime s[32:33]")
        for x in range(P0): load(x)
        YOUNG = cnt(-1, P0) - extra(-1)
        a(f"s_waitcnt lgkmcnt(0)\ns_cmp_le_i32 s40, 0\ns_cselect_b32 s{sC0}, 0x8000, s40")
    U = lambda lag: int(round(lag / sens * 2**24))
    a(f"""
    s_add_u32 s52, s53, 1
    s_max_u32 s52, s52, 1
    s_mov_b32 s54, s52
    s_mov_b32 s53, 0
    s_lshl_b32 s3, s2, 2
    s_add_u32 s3, s3, s{sJ}
    s_cmp_lg_u32 s3, 0
    s_cbranch_scc1 L_nocas
    s_atomic_cmpswap s[52:53], s[16:17], 0x0
    L_nocas:
    s_mov_b32 s64, 0x33333333
    s_mov_b32 s65, 0x33333333
    s_mov_b32 s66, 0xcccccccc
    s_mov_b32 s67, 0xcccccccc
    s_cmp_le_i32 s40, 0
    s_cselect_b64 s[64:65], 0, s[64:65]
    s_cmp_le_i32 s41, 0
    s_cselect_b32 s{sC1}, 0x8000, s41
    s_cselect_b64 s[66:67], 0, s[66:67]
    s_or_b64 s[64:65], s[64:65], s[66:67]
    s_min_u32 s{sC0}, s{sC0}, 0x8000
    s_min_u32 s{sC1}, s{sC1}, 0x8000
    s_add_u32 s{sNb0}, s{sC0}, 15
    s_lshr_b32 s{sNb0}, s{sNb0}, 4
    s_add_u32 s{sNb1}, s{sC1}, 15
    s_lshr_b32 s{sNb1}, s{sNb1}, 4
    """)
    for i in range(0, 64, 2): a(f"v_mov_b64 v[{vA+i}:{vA+i+1}], 0")
    a(f"""
    v_mov_b64 v[{vP}:{vP+1}], 0
    v_mov_b64 v[{vAq}:{vAq+1}], 0
    v_mov_b64 v[{vAq+2}:{vAq+3}], 0
    v_and_b32 v{vFl}, 31, v1
    s_lshl_b32 s3, s{sHead}, 5
    v_add_u32 v{vFl}, s3, v{vFl}
    v_lshlrev_b32 v{vFl}, 7, v{vFl}
    v_mov_b32 v{vL}, 0
    v_mov_b32 v{vM}, 0xf149f2ca
    v_mov_b32 v{vNeg}, 0xff800000
    s_mov_b32 s{sC}, {C_SCALE}
    v_mul_f32 v{vMC}, s{sC}, v{vM}
    s_mov_b32 s{sModd}, 0xf0f0f0f0
    s_mov_b32 s{sModd+1}, 0xf0f0f0f0
    s_mov_b32 s{sMhi}, 0xff00ff00
    s_mov_b32 s{sMhi+1}, 0xff00ff00
    s_mov_b32 s{sSelLo}, 0x05040100
    s_mov_b32 s{sSelHi}, 0x07060302
    s_getreg_b32 s3, hwreg(HW_REG_XCC_ID)
    s_and_b32 s3, s3, 7
    s_mov_b32 s{sBase}, {U(xcc[0] + base)}
    """)
    for x in range(1, 8):
        if U(xcc[x] + base) != U(xcc[0] + base):
            a(f"s_cmp_eq_u32 s3, {x}\ns_cselect_b32 s{sBase}, {U(xcc[x] + base)}, s{sBase}")
    if cu:
        a(f"s_getreg_b32 s3, hwreg(HW_REG_HW_ID, 8, 4)\ns_mul_i32 s3, s3, {U(cu)}\ns_add_u32 s{sBase}, s{sBase}, s3")
    if he:
        a(f"s_bitcmp0_b32 s{sHead}, 0\ns_cselect_b32 s3, {U(he)}, 0\ns_add_u32 s{sBase}, s{sBase}, s3")
    if cons:
        a(f"s_cmp_ge_u32 s{sSl}, 24\ns_cselect_b32 s3, {U(cons)}, 0\ns_add_u32 s{sBase}, s{sBase}, s3")
    if w0:
        a(f"s_cmp_eq_u32 s{sJ}, 0\ns_cselect_b32 s3, {U(w0)}, 0\ns_add_u32 s{sBase}, s{sBase}, s3")
    a(f"""
    s_max_i32 s{sIncL}, s{sBase}, 0
    s_lshl_b32 s{sIncL}, s{sIncL}, 8
    s_sub_u32 s3, 0, s{sBase}
    s_max_i32 s{sIncS}, s3, 0
    s_lshl_b32 s{sIncS}, s{sIncS}, 8
    s_mov_b32 s{sFb}, 0
    s_cmp_lg_u32 s{sJ}, 0
    s_cbranch_scc1 L_w1
    s_waitcnt vmcnt({YOUNG+5+4*xclear})
    s_branch L_w2
    L_w1:
    s_waitcnt vmcnt({YOUNG})
    L_w2:
    """)
    stamp(1)
    if mid[0]:
        a("s_cmp_eq_u32 s47, 0\ns_cbranch_scc1 L_midA")
        for x in range(P0, P0 + mid[0]): load(x)
        a("L_midA:")
    a(f"""
    ds_write_b128 v{vX+6}, v[{vTb}:{vTb+3}]
    ds_write_b128 v{vX+6}, v[{vTb+4}:{vTb+7}] offset:16
    ds_write_b128 v{vX+7}, v[{vTb+8}:{vTb+11}]
    ds_write_b128 v{vX+7}, v[{vTb+12}:{vTb+15}] offset:16
    """)
    mk = [56, 58, 60, 62, 92, 94, 96, 98]
    for k in range(8):
        a(f"v_cmp_eq_u32 s[{mk[k]}:{mk[k]+1}], v{vTb+k}, v{vTb+8+k}")
    for k in range(1, 8):
        a(f"s_and_b64 s[{mk[k]}:{mk[k]+1}], s[{mk[k]}:{mk[k]+1}], s[{mk[k-1]}:{mk[k-1]+1}]")
    a(f"s_ff0_i32_b64 s3, s[{mk[7]}:{mk[7]+1}]")
    a(f"s_lshl_b32 s39, s{sJ}, 6\ns_add_u32 s39, s39, s3\ns_lshl_b32 s39, s39, 3")
    for k in range(7):
        a(f"s_bitcmp1_b64 s[{mk[k]}:{mk[k]+1}], s3\ns_addc_u32 s39, s39, 0")
    a(f"""
    s_cmp_lt_i32 s3, 0
    s_cselect_b32 s39, 2048, s39
    s_lshl_b32 s3, s{sJ}, 2
    v_mov_b32 v{vX}, s3
    v_mov_b32 v{vX+1}, s39
    ds_write_b32 v{vX}, v{vX+1} offset:{LDS_S}
    """)
    for i in range(8): a(f"v_cndmask_b32 v{vQ+i}, 0, v{vQ+i}, s[64:65]")
    a(f"""
    v_mov_b32 v{vX}, 0
    s_cmp_eq_u32 s{sJ}, 0
    s_cselect_b32 s{sSt}, 4, 0
    s_waitcnt lgkmcnt(0)
    s_barrier
    ds_read_b128 v[{vTb}:{vTb+3}], v{vX} offset:{LDS_S}
    """)
    if mid[1]:
        a("s_cmp_eq_u32 s47, 0\ns_cbranch_scc1 L_midB")
        for x in range(P0 + mid[0], P0 + mid[0] + mid[1]): load(x)
        a("L_midB:")
    a(f"""
    s_waitcnt lgkmcnt(0)
    v_min_u32 v{vTb}, v{vTb}, v{vTb+1}
    v_min3_u32 v{vTb}, v{vTb}, v{vTb+2}, v{vTb+3}
    s_min_u32 s3, s{sNb0}, s{sNb1}
    v_readfirstlane_b32 s{sS}, v{vTb}
    s_min_u32 s{sS}, s{sS}, s3
    s_add_u32 s{sN}, s{sNb0}, s{sNb1}
    s_sub_u32 s{sN}, s{sN}, s{sS}
    s_sub_u32 s39, s{sS}, s{sNb0}
    s_lshl_b32 s66, s{sJ}, 2
    s_sub_u32 s64, s{sC0}, s66
    s_sub_u32 s65, s{sC1}, s66
    """)
    for r in range(2):
        b = vTb + r*8
        if not blk:
            a(f"""
            v_lshlrev_b32 v{b}, 5, v1
            s_add_u32 s3, s{sSl}, {r*2048}
            v_add_u32 v{b}, s3, v{b}
            """)
        else:
            a(f"""
            v_add_u32 v{b+4}, {64*r}, v1
            s_lshr_b32 s3, s{sN}, 7
            s_lshl_b32 s3, s3, 2
            v_cmp_gt_u32 vcc, s3, v{b+4}
            v_lshlrev_b32 v{b}, 5, v{b+4}
            v_and_b32 v{b+5}, 0xffffff80, v{b}
            v_add_u32 v{b}, s{sSl}, v{b}
            v_and_b32 v{b+4}, 3, v{b+4}
            s_lshl_b32 s3, s{sSl}, 2
            v_add3_u32 v{b+5}, v{b+5}, s3, v{b+4}
            v_cndmask_b32 v{b}, v{b}, v{b+5}, vcc
            """)
            if G > 1:
                W = 128 // G; lgW = int(math.log2(W)); SG = 32 // G
                a(f"""
                v_add_u32 v{b+4}, {64*r}, v1
                s_lshr_b32 s3, s{sN}, 7
                s_lshl_b32 s44, s3, 2
                v_cmp_gt_u32 vcc, s44, v{b+4}
                v_cmp_lt_u32 s[92:93], 3, v{b+4}
                s_sub_u32 s3, s3, 1
                s_lshr_b32 s44, s{sSl}, {int(math.log2(SG))}
                s_mul_i32 s3, s3, s44
                s_lshl_b32 s3, s3, {lgW}
                s_and_b32 s44, s{sSl}, {SG-1}
                s_lshl_b32 s44, s44, 2
                s_add_u32 s3, s3, s44
                s_add_u32 s3, s3, {128 - W}
                s_and_b64 vcc, vcc, s[92:93]
                v_lshrrev_b32 v{b+5}, 2, v{b+4}
                v_lshlrev_b32 v{b+5}, {lgW}, v{b+5}
                v_and_b32 v{b+4}, 3, v{b+4}
                v_add3_u32 v{b+5}, v{b+5}, s3, v{b+4}
                v_cndmask_b32 v{b}, v{b}, v{b+5}, vcc
                """)
        a(f"""
        v_cmp_gt_u32 s[{56+r*4}:{57+r*4}], s{sNb0}, v{b}
        v_add_u32 v{b+1}, s39, v{b}
        v_cmp_gt_u32 s[{58+r*4}:{59+r*4}], s{sN}, v{b}
        v_cndmask_b32 v{b+1}, v{b+1}, v{b}, s[{56+r*4}:{57+r*4}]
        v_min_u32 v{b+2}, 2047, v{b+1}
        v_lshlrev_b32 v{b+2}, 2, v{b+2}
        v_add_u32 v{b+4}, 0x2000, v{b+2}
        v_cndmask_b32 v{b+2}, v{b+4}, v{b+2}, s[{56+r*4}:{57+r*4}]
        ds_read_b32 v{b+3}, v{b+2}
        """)
    a(f"""
    v_mov_b32 v{vX+4}, 0x3333
    v_mov_b32 v{vX+5}, 0x33333333
    v_mov_b32 v{vX+6}, 0xcccc
    v_mov_b32 v{vX+7}, 0xcccccccc
    """)
    for r in range(2):
        b = vTb + r*8
        isA = f"s[{56+r*4}:{57+r*4}]"; valid = f"s[{58+r*4}:{59+r*4}]"
        d = vD0 + 3*r
        a(f"""
        v_lshlrev_b32 v{b+4}, 4, v{b+1}
        v_sub_u32 v{b+5}, s64, v{b+4}
        v_sub_u32 v{b+6}, s65, v{b+4}
        v_cmp_gt_u32 vcc, s{sS}, v{b}
        s_andn2_b64 s[92:93], {valid}, {isA}
        s_or_b64 s[92:93], s[92:93], vcc
        v_cndmask_b32 v{b+5}, 0, v{b+5}, {isA}
        v_cndmask_b32 v{b+6}, 0, v{b+6}, s[92:93]
        v_cmp_lt_i32 s[94:95], 0, v{b+5}
        v_cmp_lt_i32 s[96:97], 1, v{b+5}
        v_cmp_lt_i32 s[98:99], 2, v{b+5}
        v_cmp_lt_i32 vcc, 3, v{b+5}
        v_cndmask_b32 v{d+1}, 0, v{vX+4}, s[94:95]
        v_cndmask_b32 v{d+1}, v{d+1}, v{vX+5}, s[96:97]
        v_cndmask_b32 v{d+2}, 0, v{vX+4}, s[98:99]
        v_cndmask_b32 v{d+2}, v{d+2}, v{vX+5}, vcc
        v_cmp_lt_i32 s[94:95], 0, v{b+6}
        v_cmp_lt_i32 s[96:97], 1, v{b+6}
        v_cmp_lt_i32 s[98:99], 2, v{b+6}
        v_cmp_lt_i32 vcc, 3, v{b+6}
        v_cndmask_b32 v{vX+2}, 0, v{vX+6}, s[94:95]
        v_cndmask_b32 v{vX+2}, v{vX+2}, v{vX+7}, s[96:97]
        v_cndmask_b32 v{vX+3}, 0, v{vX+6}, s[98:99]
        v_cndmask_b32 v{vX+3}, v{vX+3}, v{vX+7}, vcc
        v_or_b32 v{d+1}, v{d+1}, v{vX+2}
        v_or_b32 v{d+2}, v{d+2}, v{vX+3}
        s_waitcnt lgkmcnt({1-r})
        v_lshlrev_b32 v{b+3}, 16, v{b+3}
        v_cmp_ne_u32 vcc, 0, v{d+1}
        v_add_u32 v{b+3}, s46, v{b+3}
        v_mov_b32 v{vX}, {OOB}
        v_cndmask_b32 v{d}, v{vX}, v{b+3}, vcc
        """)
    a(f"""
    s_sub_u32 s3, s{sN}, s{sSl}
    s_add_u32 s3, s3, 31
    s_ashr_i32 s3, s3, 5
    s_max_i32 s3, s3, 1
    s_lshl_b32 s39, s3, 5
    s_sub_u32 s39, s39, s{sN}
    s_mul_i32 s39, s39, {int(round(2 * phi * gain * SP / 4 / 128 * 2**24))}
    s_add_u32 s{sBase}, s{sBase}, s39
    s_add_u32 s3, s3, 3
    s_lshr_b32 s{sIt}, s3, 2
    s_mov_b32 s{sIdx}, 0
    s_lshl_b32 s{sAccL}, s{sJ}, 30
    s_mov_b32 s{sAccS}, s{sAccL}
    """)
    def fetch_off():
        a(f"""
        v_readlane_b32 s{sOff}, v{vD0}, s{sIdx}
        s_add_u32 s3, s{sIdx}, 1
        v_readlane_b32 s{sOff+1}, v{vD0}, s3
        s_add_u32 s3, s{sIdx}, 2
        v_readlane_b32 s{sOff+2}, v{vD0}, s3
        s_add_u32 s3, s{sIdx}, 3
        v_readlane_b32 s{sOff+3}, v{vD0}, s3
        """)
    def fetch_masks():
        for e in range(4):
            a(f"v_readlane_b32 s{sMask+2*e}, v{vD0+1}, s{sIdx}")
            a(f"v_readlane_b32 s{sMask+2*e+1}, v{vD0+2}, s{sIdx}")
            a(f"s_add_u32 s{sIdx}, s{sIdx}, 1")
    def next_off(tag):
        a(f"""
        s_cmp_lg_u32 s{sIdx}, 64
        s_cbranch_scc1 L_noswap{tag}
        v_mov_b32 v{vD0}, v{vD0+3}
        v_mov_b32 v{vD0+1}, v{vD0+4}
        v_mov_b32 v{vD0+2}, v{vD0+5}
        s_mov_b32 s{sIdx}, 0
        L_noswap{tag}:
        """)
        fetch_off()
    if spec:
        a(f"s_mov_b64 s[92:93], s[{sOff}:{sOff+1}]\ns_mov_b64 s[94:95], s[{sOff+2}:{sOff+3}]")
    fetch_off()
    stamp(2)
    if sst: a("s_memrealtime s[88:89]")
    if spec:
        a(f"""
        s_xor_b64 s[92:93], s[92:93], s[{sOff}:{sOff+1}]
        s_xor_b64 s[94:95], s[94:95], s[{sOff+2}:{sOff+3}]
        s_or_b64 s[92:93], s[92:93], s[94:95]
        s_cbranch_scc0 L_spec_ok
        s_waitcnt vmcnt(0)
        """)
        for i in range(0, 32, 2): a(f"v_mov_b64 v[{vV+i}:{vV+i+1}], 0")
        a(f"v_mov_b32 v{vProg}, 0x5a00\ns_branch L_burst")
    else:
        a(f"s_cmp_eq_u32 s47, 1\ns_nop 3\ns_cbranch_scc0 L_burst")
    hist_jump = list(a.hist)
    if spec: a("L_spec_ok:")
    for x in range(P0 + mid[0] + mid[1], 16): load(x)
    fetch_masks()
    a("s_branch L_burst_qk")
    hist_jump2 = list(a.hist)
    def QK(e):
        d = vS + 4*e
        a(f"v_mfma_f32_16x16x32_bf16 v[{d}:{d+3}], v[{kslot(e,0)}:{kslot(e,0)+3}], v[{vQ}:{vQ+3}], 0")
        a(f"v_mfma_f32_16x16x32_bf16 v[{d}:{d+3}], v[{kslot(e,1)}:{kslot(e,1)+3}], v[{vQ+4}:{vQ+7}], v[{d}:{d+3}]")
    def RED(e):
        d = vS + 4*e
        a(f"""
        v_cndmask_b32 v{d}, v{d}, v{d+1}, s[{sModd}:{sModd+1}]
        v_cndmask_b32 v{d+2}, v{d+2}, v{d+3}, s[{sModd}:{sModd+1}]
        v_cndmask_b32 v{d}, v{d}, v{d+2}, s[{sMhi}:{sMhi+1}]
        v_add_f32_dpp v{d+1}, v{d}, v{d} row_ror:4 row_mask:0xf bank_mask:0xf
        v_add_f32_dpp v{d}, v{d+1}, v{d+1} row_ror:8 row_mask:0xf bank_mask:0xf
        v_cndmask_b32 v{d}, v{vNeg}, v{d}, s[{sMask+2*e}:{sMask+2*e+1}]
        """)
    def SM(wave_max):
        T = [vS + 4*e for e in range(4)]
        a(f"""
        v_max3_f32 v{vM}, v{vM}, v{T[0]}, v{T[1]}
        v_max3_f32 v{vM}, v{vM}, v{T[2]}, v{T[3]}
        """)
        if wave_max:
            a(f"""
            v_mov_b32 v{vX}, v{vM}
            v_permlane32_swap_b32 v{vM}, v{vX}
            v_max_f32 v{vM}, v{vM}, v{vX}
            v_mov_b32 v{vX}, v{vM}
            v_permlane16_swap_b32 v{vM}, v{vX}
            v_max_f32 v{vM}, v{vM}, v{vX}
            """)
        a(f"""
        v_mul_f32 v{vX}, s{sC}, v{vM}
        v_sub_f32 v{vAl}, v{vMC}, v{vX}
        v_fma_f32 v{T[0]}, v{T[0]}, s{sC}, -v{vX}
        v_fma_f32 v{T[1]}, v{T[1]}, s{sC}, -v{vX}
        v_fma_f32 v{T[2]}, v{T[2]}, s{sC}, -v{vX}
        v_fma_f32 v{T[3]}, v{T[3]}, s{sC}, -v{vX}
        v_exp_f32 v{vAl}, v{vAl}
        v_exp_f32 v{T[0]}, v{T[0]}
        v_exp_f32 v{T[1]}, v{T[1]}
        v_exp_f32 v{T[2]}, v{T[2]}
        v_exp_f32 v{T[3]}, v{T[3]}
        v_mov_b32 v{vMC}, v{vX}
        v_mov_b32_dpp v{vAq}, v{vAl} quad_perm:[0,0,0,0] row_mask:0xf bank_mask:0xf
        v_mov_b32_dpp v{vAq+1}, v{vAl} quad_perm:[1,1,1,1] row_mask:0xf bank_mask:0xf
        v_mov_b32_dpp v{vAq+2}, v{vAl} quad_perm:[2,2,2,2] row_mask:0xf bank_mask:0xf
        v_mov_b32_dpp v{vAq+3}, v{vAl} quad_perm:[3,3,3,3] row_mask:0xf bank_mask:0xf
        v_add_f32 v{vX}, v{T[0]}, v{T[1]}
        v_add_f32 v{vX+1}, v{T[2]}, v{T[3]}
        v_cvt_pk_bf16_f32 v{vP}, v{T[0]}, v{T[1]}
        v_cvt_pk_bf16_f32 v{vP+1}, v{T[2]}, v{T[3]}
        v_add_f32 v{vX}, v{vX}, v{vX+1}
        v_fma_f32 v{vL}, v{vL}, v{vAl}, v{vX}
        """)
    def RS(t0, t1):
        for t in range(t0, t1):
            r = vA + 4*t
            a(f"v_pk_mul_f32 v[{r}:{r+1}], v[{r}:{r+1}], v[{vAq}:{vAq+1}]")
            a(f"v_pk_mul_f32 v[{r+2}:{r+3}], v[{r+2}:{r+3}], v[{vAq+2}:{vAq+3}]")
    def PV(h, d0, d1):
        def perm(dd):
            t = vT + 2*(dd & 3); rr = dd >> 1; sel = sSelHi if dd & 1 else sSelLo
            a(f"v_perm_b32 v{t}, v{vslot(h,1)+rr}, v{vslot(h,0)+rr}, s{sel}")
            a(f"v_perm_b32 v{t+1}, v{vslot(h,3)+rr}, v{vslot(h,2)+rr}, s{sel}")
        def mm(dd):
            t = vT + 2*(dd & 3); r = vA + 4*(8*h + dd)
            a(f"v_mfma_f32_4x4x4_16b_bf16 v[{r}:{r+3}], v[{vP}:{vP+1}], v[{t}:{t+1}], v[{r}:{r+3}]")
        perm(d0)
        for dd in range(d0, d1):
            if dd + 1 < d1: perm(dd + 1)
            mm(dd)
    def FB(k=0):
        G = int(round(gain * SP / 4 / 128 * 2**24)); B0 = int(round((bias if k == 0 or bias2 is None else bias2) * 128))
        back = sum(1 for y in range(XPL + 1 - 8*k, 16 + 4 - 8*k) if (y % 16) % SP == SP - 1)
        a(f"""
        s_cmp_eq_u32 s{sFb}, 0
        s_mov_b32 s{sFb}, 1
        s_cbranch_scc1 L_nofb{k}
        """)
        if phys:
            a(f"""
            v_readfirstlane_b32 s3, v{vProg}
            s_mov_b32 s44, 0x00100010
            s_sub_u32 s3, {8 + back}, s3
            s_pack_ll_b32_b16 s3, s3, s3
            s_mov_b32 s45, 0x00040004
            v_pk_add_u16 v{vSib}, v{vSib}, s3
            v_pk_add_u16 v{vSib+1}, v{vSib+1}, s3
            s_mov_b32 s47, 0xfff8fff8
            v_pk_min_u16 v{vSib}, v{vSib}, s44
            v_pk_min_u16 v{vSib+1}, v{vSib+1}, s44
            v_pk_lshrrev_b16 v{vX}, s45, v{vSib}
            v_pk_lshrrev_b16 v{vX+1}, s45, v{vSib+1}
            v_pk_mad_u16 v{vSib}, v{vX}, s47, v{vSib}
            v_pk_mad_u16 v{vSib+1}, v{vX+1}, s47, v{vSib+1}
            v_pk_add_u16 v{vSib}, v{vSib}, v{vSib+1}
            s_mov_b32 s3, {B0 - 256*8}
            v_lshrrev_b32 v{vSib+1}, 16, v{vSib}
            v_and_b32 v{vSib}, 0xffff, v{vSib}
            v_add_u32 v{vSib}, v{vSib}, v{vSib+1}
            v_add_u32_dpp v{vSib}, v{vSib}, v{vSib} row_ror:1 row_mask:0xf bank_mask:0xf
            v_add_u32_dpp v{vSib}, v{vSib}, v{vSib} row_ror:2 row_mask:0xf bank_mask:0xf
            """)
        else:
            a(f"""
            v_add_u32 v{vSib}, v{vSib}, v{vSib+1}
            v_readfirstlane_b32 s3, v{vProg}
            v_add_u32_dpp v{vSib}, v{vSib}, v{vSib} row_ror:1 row_mask:0xf bank_mask:0xf
            s_sub_u32 s3, s3, {back}
            s_lshl_b32 s3, s3, 7
            v_add_u32_dpp v{vSib}, v{vSib}, v{vSib} row_ror:2 row_mask:0xf bank_mask:0xf
            s_sub_u32 s3, {B0}, s3
            """)
        a(f"""
        v_add_u32_dpp v{vSib}, v{vSib}, v{vSib} row_ror:4 row_mask:0xf bank_mask:0xf
        v_add_u32_dpp v{vSib}, v{vSib}, v{vSib} row_ror:8 row_mask:0xf bank_mask:0xf
        v_readlane_b32 s39, v{vSib}, 0
        v_readlane_b32 s44, v{vSib}, 16
        v_readlane_b32 s45, v{vSib}, 32
        v_readlane_b32 s47, v{vSib}, 48
        s_add_u32 s3, s3, s39
        s_add_u32 s44, s44, s45
        s_add_u32 s3, s3, s47
        s_add_u32 s3, s3, s44
        s_max_i32 s3, s3, -1024
        s_min_i32 s3, s3, 1024
        """)
        if dbg:
            a(f"s_add_u32 s30, s30, s3\ns_mul_i32 s39, s3, s3\ns_add_u32 s32, s32, s39")
        a(f"""
        s_mul_i32 s3, s3, {G}
        s_add_u32 s3, s3, s{sBase}
        s_min_i32 s3, s3, {int(umax * 2**24)}
        s_max_i32 s3, s3, {-int(umin * 2**24)}
        s_max_i32 s{sIncL}, s3, 0
        s_sub_u32 s3, 0, s3
        s_max_i32 s{sIncS}, s3, 0
        s_lshl_b32 s{sIncL}, s{sIncL}, 8
        s_lshl_b32 s{sIncS}, s{sIncS}, 8
        L_nofb{k}:
        """)
    def flag_store():
        a(f"""
        s_lshl_b32 s3, s{sHead}, 5
        s_add_u32 s3, s3, s{sSl}
        s_lshl_b32 s3, s3, 7
        v_lshlrev_b32 v{vTb}, 4, v1
        v_add_u32 v{vTb}, s3, v{vTb}
        v_mov_b32 v{vTb+4}, s{sTag}
        v_mov_b32 v{vTb+5}, s{sTag}
        v_mov_b32 v{vTb+6}, s{sTag}
        v_mov_b32 v{vTb+7}, s{sTag}
        s_cmp_eq_u32 s3, 0
        s_movk_i32 s3, 0xff
        s_cselect_b32 s3, s3, 0
        s_or_b32 exec_lo, s3, 0xff00
        s_mov_b32 exec_hi, 0
        global_store_dwordx4 v{vTb}, v[{vTb+4}:{vTb+7}], s[18:19] sc1
        s_mov_b64 exec, -1
        """)
    def TAGSM():
        a(f"""
        s_cmp_eq_u32 s{sSt}, 0
        s_cbranch_scc1 L_st_done
        s_cmp_eq_u32 s{sSt}, 4
        s_cbranch_scc1 L_st_load
        s_cmp_eq_u32 s{sSt}, 3
        s_cbranch_scc1 L_st_tag
        s_cmp_eq_u32 s{sSt}, 2
        s_cbranch_scc1 L_st_fl
        v_cmp_ne_u32 vcc, s{sTag}, v{vNo+1}
        s_cmp_eq_u64 vcc, 0
        s_cselect_b32 s{sSt}, 0, 2
        s_branch L_st_done
        L_st_fl:
        global_load_dword v{vNo+1}, v{vFl}, s[18:19] offset:128 sc1
        s_mov_b32 s{sSt}, 1
        s_branch L_st_done
        L_st_tag:
        v_readfirstlane_b32 s{sTag}, v{vNo}
        s_cmp_eq_u32 s{sTag}, 0
        s_cbranch_scc1 L_st_load
        """)
        flag_store()
        a(f"""
        s_cmp_lt_u32 s{sSl}, {32-C}
        s_cselect_b32 s{sSt}, 0, 2
        s_branch L_st_done
        L_st_load:
        v_mov_b32 v{vTb}, 0
        global_load_dword v{vNo}, v{vTb}, s[16:17] sc1
        s_mov_b32 s{sSt}, 3
        L_st_done:
        """)
    sched = {0: [fetch_masks], 1: [lambda: PV(0, 0, 4)], 2: [lambda: PV(0, 4, 8)], 3: [lambda: RS(8, 16)], 4: [FB],
             5: [lambda: PV(1, 0, 4)], 6: [lambda: PV(1, 4, 8)], 7: [lambda: QK(0), TAGSM], 8: [lambda: RED(0)], 9: [lambda: QK(1)],
             10: [lambda: RED(1)], 11: [lambda: QK(2)], 12: [lambda: RED(2)], 13: [lambda: QK(3), lambda: RED(3)],
             14: [lambda: SM(False)], 15: [lambda: RS(0, 8)]}
    if fb2: sched[12].append(lambda: FB(1))
    assert (XPL - 16) <= 4 - R
    a.raw("; ---- paced tile: 16 issue points, each waits for the window (4/5/6 deep) and issues one load\n.p2align 6")
    a("L_loop:")
    for x in range(16):
        a(f"""
        s_add_u32 s{sAccL}, s{sAccL}, s{sIncL}
        s_cbranch_scc1 L_lax{x}
        s_add_u32 s{sAccS}, s{sAccS}, s{sIncS}
        s_cbranch_scc0 L_nrm{x}
        s_waitcnt vmcnt({cnt(x-(R-2), x)})
        L_nrm{x}:
        s_waitcnt vmcnt({cnt(x-(R-1), x)})
        L_lax{x}:
        s_waitcnt vmcnt({cnt(x-R, x)})
        """)
        load(x)
        if x == 15: next_off(0)
        for t in sched[x]: t()
    if sst:
        a(f"s_cmp_lg_u32 s{sIt}, 18\ns_cbranch_scc1 L_tr5\ns_memrealtime s[90:91]\nL_tr5:")
    if trace:
        for k, i in zip(trace, (1, 2, 4, 5)):
            a(f"s_cmp_lg_u32 s{sIt}, {k}\ns_cbranch_scc1 L_tr{i}\ns_memrealtime s[{STR[i]}:{STR[i]+1}]\nL_tr{i}:")
    a(f"s_sub_u32 s{sIt}, s{sIt}, 1\ns_cmp_gt_u32 s{sIt}, {B}\ns_cbranch_scc1 L_loop")
    a.check_backedge("L_loop")
    a("L_burst:")
    for x in range(8): load(x)
    fetch_masks()
    RS(8, 16)
    a(f"s_waitcnt vmcnt({cnt(11-16, 8)})")
    PV(0, 0, 8)
    for x in range(8, 12): load(x)
    a(f"s_waitcnt vmcnt({cnt(15-16, 12)})")
    PV(1, 0, 8)
    for x in range(12, 16): load(x)
    a("L_burst_qk:")
    for e in range(4):
        a(f"s_waitcnt vmcnt({cnt(2*e+1, 16)})")
        QK(e)
        if e: RED(e-1)
    RED(3); SM(True); RS(0, 8)
    a(f"s_sub_u32 s{sIt}, s{sIt}, 1\ns_cmp_eq_u32 s{sIt}, 0\ns_cbranch_scc1 L_drain")
    hist_d = list(a.hist)
    next_off(1)
    a(f"s_cmp_gt_u32 s{sIt}, {B}\ns_nop 1\ns_cbranch_scc1 L_loop")
    a.check_backedge("L_loop")
    a("s_branch L_burst")
    a.check_backedge("L_burst")
    a.check_jump("L_burst", hist_jump)
    a.check_jump("L_burst_qk", hist_jump2)
    a("L_drain:")
    a.hist = hist_d
    x0, x1 = vX, vX+1
    vCo, vCm, vOut, vCw = vTb+8, vTb+12, vTb+13, vTb+14
    RS(8, 16)
    lgC = 6 if pbf16 else 7
    a(f"""
    v_mov_b32 v{x1}, v{vL}
    v_lshrrev_b32 v{vX+2}, 4, v1
    v_and_b32 v{vX+3}, 15, v1
    v_permlane32_swap_b32 v{vL}, v{x1}
    v_lshlrev_b32 v{vX+2}, 3, v{vX+2}
    v_add_f32 v{vL}, v{vL}, v{x1}
    v_lshl_add_u32 v{vX+2}, v{vX+3}, 5, v{vX+2}
    v_mov_b32 v{x1}, v{vL}
    s_lshl_b32 s3, s{sJ}, 12
    v_add_u32 v{vX+2}, s3, v{vX+2}
    v_permlane16_swap_b32 v{vL}, v{x1}
    s_lshl_b32 s3, s{sJ}, 2
    v_add_f32 v{vL}, v{vL}, v{x1}
    v_lshlrev_b32 v{x1}, 4, v1
    v_add_u32 v{vX+3}, s3, v{x1}
    s_mov_b64 exec, 0xf
    ds_write_b32 v{vX+3}, v{vMC} offset:{LDS_M}
    ds_write_b32 v{vX+3}, v{vL} offset:{LDS_L}
    s_mov_b64 exec, -1
    s_lshl_b32 s3, s{sJ}, 4
    v_mov_b32 v{vX+4}, s3
    s_lshl_b32 s3, s{sJ}, 10
    v_add_u32 v{vX+5}, s3, v{x1}
    s_and_b32 s3, s{sSl}, 7
    s_lshl_b32 s3, s3, 2
    s_add_u32 s3, s3, s{sJ}
    s_lshr_b32 s44, s3, 3
    s_and_b32 s45, s3, 7
    s_lshl_b32 s39, s{sHead}, 2
    s_add_u32 s39, s39, s44
    v_lshrrev_b32 v{vX+6}, 3, v1
    v_and_b32 v{vX+7}, 7, v1
    v_lshlrev_b32 v{vCo}, {lgRB}, v{vX+6}
    v_lshl_add_u32 v{vCo}, v{vX+7}, {lgC-3}, v{vCo}
    s_lshl_b32 s3, s39, {lgRB+5}
    s_lshl_b32 s46, s45, {lgC}
    s_add_u32 s3, s3, s46
    s_add_u32 s3, s3, {DA_OFF}
    v_add_u32 v{vCo}, s3, v{vCo}
    s_lshl_b32 s3, s39, 12
    s_add_u32 s3, s3, {ML_OFF}
    v_lshlrev_b32 v{vCm}, 7, v{vX+6}
    v_add_u32 v{vCm}, s3, v{vCm}
    v_and_b32 v{vCw}, 31, v1
    v_lshlrev_b32 v{vCw}, 7, v{vCw}
    v_add_u32 v{vCw}, s3, v{vCw}
    v_add_u32 v{vCo+1}, {8*RB}, v{vCo}
    v_add_u32 v{vCo+2}, {16*RB}, v{vCo}
    v_add_u32 v{vCo+3}, {24*RB}, v{vCo}
    s_lshr_b32 s3, s44, 1
    s_lshl_b32 s3, s3, 13
    s_lshl_b32 s46, s{sHead}, 10
    s_add_u32 s3, s3, s46
    s_and_b32 s46, s44, 1
    s_lshl_b32 s46, s46, 9
    s_add_u32 s3, s3, s46
    s_lshl_b32 s46, s45, 6
    s_add_u32 s3, s3, s46
    v_lshrrev_b32 v{vOut}, 4, v1
    v_lshlrev_b32 v{vOut}, 1, v{vOut}
    v_lshl_add_u32 v{vOut}, v{vX+7}, 3, v{vOut}
    v_add_u32 v{vOut}, s3, v{vOut}
    s_mov_b32 s{sFb}, 0
    """)
    if dry:
        a(f"""
        s_cmp_lt_u32 s{sSl}, {32-C}
        s_cbranch_scc1 L_dry_done
        s_mov_b32 s{sFb}, 1
        s_mov_b64 s[56:57], 0
        s_mov_b64 s[58:59], 0
        s_mov_b64 s[60:61], 0
        s_mov_b64 s[62:63], 0
        s_branch L_poll
        L_dry_done:
        """)
    a(f"""
    s_mov_b64 s[56:57], -1
    s_mov_b64 s[58:59], -1
    s_mov_b64 s[60:61], -1
    s_mov_b64 s[62:63], -1
    s_waitcnt vmcnt({cnt(11, 16)})
    """)
    vW = vK
    def REDUCE(h):
        X = lambda dd, q: vA + 4*(8*h + dd) + q
        for dd in range(4):
            for q in range(4): a(f"v_permlane32_swap_b32 v{X(dd,q)}, v{X(dd+4,q)}")
        for dd in range(4):
            for q in (0, 2): a(f"v_pk_add_f32 v[{X(dd,q)}:{X(dd,q)+1}], v[{X(dd,q)}:{X(dd,q)+1}], v[{X(dd+4,q)}:{X(dd+4,q)+1}]")
        for dd in range(2):
            for q in range(4): a(f"v_permlane16_swap_b32 v{X(dd,q)}, v{X(dd+2,q)}")
        for q in range(4):
            w = vW + 8*h + 2*q
            a(f"v_add_f32 v{w}, v{X(0,q)}, v{X(2,q)}\nv_add_f32 v{w+1}, v{X(1,q)}, v{X(3,q)}")
            a(f"ds_write_b64 v{vX+2}, v[{w}:{w+1}] offset:{LDS_O + q*1024 + h*512}")
    PV(0, 0, 8)
    REDUCE(0)
    a("s_waitcnt vmcnt(0)")
    PV(1, 0, 8)
    stamp(3)
    REDUCE(1)
    a(f"""
    s_cmp_eq_u32 s{sSt}, 0
    s_cbranch_scc1 L_chk_ok
    s_cmp_lt_u32 s{sSt}, 3
    s_cbranch_scc1 L_chk
    s_mov_b32 s52, s54
    s_mov_b32 s53, 0
    s_waitcnt lgkmcnt(0)
    s_atomic_cmpswap s[52:53], s[16:17], 0x0 glc
    s_waitcnt lgkmcnt(0)
    s_cmp_eq_u32 s52, 0
    s_cselect_b32 s{sTag}, s54, s52
    """)
    flag_store()
    a(f"""
    s_cmp_lt_u32 s{sSl}, {32-C}
    s_cbranch_scc1 L_chk_ok
    L_chk:
    global_load_dword v{vNo+1}, v{vFl}, s[18:19] offset:128 sc1
    s_waitcnt vmcnt(0)
    v_cmp_ne_u32 vcc, s{sTag}, v{vNo+1}
    s_cbranch_vccnz L_chk
    L_chk_ok:
    s_waitcnt lgkmcnt(0)
    """)
    stamp(4)
    a(f"""
    s_barrier
    ds_read_b128 v[{vS}:{vS+3}], v{vX+4} offset:{LDS_M}
    ds_read_b128 v[{vS+4}:{vS+7}], v{vX+4} offset:{LDS_L}
    """)
    for w in range(4):
        a(f"ds_read_b128 v[{vV+4*w}:{vV+4*w+3}], v{vX+5} offset:{LDS_O + w*4096}")
    if stamps: a("s_waitcnt lgkmcnt(0)")
    a(f"""
    s_waitcnt lgkmcnt(4)
    v_max_f32 v{vM}, v{vS}, v{vS+1}
    v_max3_f32 v{vM}, v{vM}, v{vS+2}, v{vS+3}
    """)
    for w in range(4): a(f"v_sub_f32 v{vS+w}, v{vS+w}, v{vM}")
    for w in range(4): a(f"v_exp_f32 v{vS+w}, v{vS+w}")
    a(f"s_waitcnt lgkmcnt(3)")
    for t in (0, 2): a(f"v_pk_mul_f32 v[{vW+t}:{vW+t+1}], v[{vV+t}:{vV+t+1}], v[{vS}:{vS+1}] op_sel_hi:[1,0]")
    for w in range(1, 4):
        a(f"s_waitcnt lgkmcnt({3-w})")
        for t in range(4): a(f"v_fmac_f32 v{vW+t}, v{vS+w}, v{vV+4*w+t}")
    if pbf16:
        a(f"""
        v_cvt_pk_bf16_f32 v{vW}, v{vW}, v{vW+1}
        v_cvt_pk_bf16_f32 v{vW+1}, v{vW+2}, v{vW+3}
        v_min_u32 v{vW}, -2, v{vW}
        v_min_u32 v{vW+1}, -2, v{vW+1}
        global_store_dwordx2 v{vPo}, v[{vW}:{vW+1}], s[18:19] sc1
        """)
    else:
        for t in range(4): a(f"v_min_u32 v{vW+t}, -2, v{vW+t}")
        a(f"global_store_dwordx4 v{vPo}, v[{vW}:{vW+3}], s[18:19] {ppol}")
    a(f"v_mul_f32 v{vM+1}, v{vS}, v{vS+4}")
    for w in range(1, 4): a(f"v_fmac_f32 v{vM+1}, v{vS+w}, v{vS+4+w}")
    a(f"""
    v_min_u32 v{vM}, -2, v{vM}
    v_min_u32 v{vM+1}, -2, v{vM+1}
    v_mov_b32 v{vM+2}, v{vM}
    v_mov_b32 v{vM+3}, v{vM+1}
    s_mov_b64 exec, 0xff
    global_store_dwordx4 v{vPm}, v[{vM}:{vM+3}], s[18:19] {ppol}
    """)
    stamp(5)
    a(f"""
    s_cmp_lt_u32 s{sSl}, {32-C}
    s_cbranch_scc1 L_fin
    L_poll:
    """)
    vO, vML = vV, vV+16
    a.lines.pop()
    def poll_round():
        for i in range(4):
            a(f"s_mov_b64 exec, s[{56+2*i}:{57+2*i}]")
            if PD == 1: a(f"s_cbranch_execz L_skip{i}")
            if pbf16: a(f"global_load_dwordx2 v[{vO+4*i}:{vO+4*i+1}], v{vCo+i}, s[18:19] sc1")
            else: a(f"global_load_dwordx4 v[{vO+4*i}:{vO+4*i+3}], v{vCo+i}, s[18:19] sc1")
            a(f"global_load_dwordx2 v[{vML+2*i}:{vML+2*i+1}], v{vCm}, s[18:19] offset:{1024*i} sc1")
            if PD == 1: a(f"L_skip{i}:")
    if mlfirst:
        a(f"""
        s_mov_b32 exec_lo, -1
        s_mov_b32 exec_hi, 0
        L_pml:
        global_load_dword v{vML}, v{vCw}, s[18:19] sc1
        s_waitcnt vmcnt(0)
        v_cmp_eq_u32 vcc, -1, v{vML}
        s_and_b64 exec, exec, vcc
        s_bcnt1_i32_b64 s3, exec
        s_cmp_gt_u32 s3, {mlk}
        s_cbranch_scc1 L_pml
        """)
    for k in range(PD - 1):
        poll_round()
        a(f"s_sleep {psl}")
    a("L_poll:")
    poll_round()
    if dry:
        a(f"s_mov_b64 exec, -1\ns_cmp_eq_u32 s{sFb}, 1\ns_cbranch_scc1 L_nowait\ns_waitcnt vmcnt(0)\nL_nowait:")
    else:
        a(f"s_mov_b64 exec, -1\ns_waitcnt vmcnt({8*(PD-1)})")
    for i in range(4):
        if pbf16:
            a(f"""
            v_max3_u32 v{vT+2}, v{vO+4*i}, v{vO+4*i+1}, v{vML+2*i}
            v_max_u32 v{vT+2}, v{vT+2}, v{vML+2*i+1}
            """)
        else:
            a(f"""
            v_max3_u32 v{vT+2}, v{vO+4*i}, v{vO+4*i+1}, v{vO+4*i+2}
            v_max3_u32 v{vT+3}, v{vO+4*i+3}, v{vML+2*i}, v{vML+2*i+1}
            v_max_u32 v{vT+2}, v{vT+2}, v{vT+3}
            """)
        a(f"v_cmp_eq_u32 s[{56+2*i}:{57+2*i}], -1, v{vT+2}")
    a(f"""
    s_or_b64 s[64:65], s[56:57], s[58:59]
    s_or_b64 s[66:67], s[60:61], s[62:63]
    s_or_b64 s[64:65], s[64:65], s[66:67]
    """)
    if dry:
        a(f"s_cselect_b32 s3, 1, 0\ns_cmp_gt_u32 s3, s{sFb}")
    if psleep:
        a(f"s_cbranch_scc0 L_poll_done\ns_sleep {psleep}\ns_branch L_poll\nL_poll_done:")
    else:
        a("s_cbranch_scc1 L_poll")
    a.check_backedge("L_poll")
    if stamps and dry: a(f's_cmp_eq_u32 s{sFb}, 1\ns_cbranch_scc1 L_nost6')
    stamp(6)
    if stamps and dry: a('L_nost6:')
    m = vT; t = vT+1; vF = vS; vR = vS+4; vU = vK+16
    a(f"""
    v_max_f32 v{m}, v{vML}, v{vML+2}
    v_max3_f32 v{m}, v{m}, v{vML+4}, v{vML+6}
    """)
    if pbf16:
        for i in range(4):
            o = vO + 4*i; u = vU + 4*i
            a(f"""
            v_and_b32 v{u+3}, 0xffff0000, v{o+1}
            v_lshlrev_b32 v{u+2}, 16, v{o+1}
            v_and_b32 v{u+1}, 0xffff0000, v{o}
            v_lshlrev_b32 v{u}, 16, v{o}
            """)
    src = vU if pbf16 else vO
    a(f"""
    v_max_f32_dpp v{m}, v{m}, v{m} row_ror:8 row_mask:0xf bank_mask:0xf
    v_mov_b32 v{t}, v{m}
    v_permlane16_swap_b32 v{m}, v{t}
    v_max_f32 v{m}, v{m}, v{t}
    v_mov_b32 v{t}, v{m}
    v_permlane32_swap_b32 v{m}, v{t}
    v_max_f32 v{m}, v{m}, v{t}
    """)
    for i in range(4): a(f"v_sub_f32 v{vF+i}, v{vML+2*i}, v{m}")
    for i in range(4): a(f"v_exp_f32 v{vF+i}, v{vF+i}")
    a(f"v_mul_f32 v{m}, v{vF}, v{vML+1}")
    for k in (0, 2): a(f"v_pk_mul_f32 v[{vR+k}:{vR+k+1}], v[{src+k}:{src+k+1}], v[{vF}:{vF+1}] op_sel_hi:[1,0]")
    for i in range(1, 4):
        a(f"v_fmac_f32 v{m}, v{vF+i}, v{vML+2*i+1}")
        for k in range(4): a(f"v_fmac_f32 v{vR+k}, v{vF+i}, v{src+4*i+k}")
    a(f"""
    v_mov_b32 v{t}, v{m}
    v_permlane32_swap_b32 v{vR}, v{vR+2}
    v_permlane32_swap_b32 v{vR+1}, v{vR+3}
    v_permlane32_swap_b32 v{m}, v{t}
    v_add_f32 v{vR}, v{vR}, v{vR+2}
    v_add_f32 v{vR+1}, v{vR+1}, v{vR+3}
    v_add_f32 v{m}, v{m}, v{t}
    v_mov_b32 v{t}, v{m}
    v_permlane16_swap_b32 v{vR}, v{vR+1}
    v_permlane16_swap_b32 v{m}, v{t}
    v_add_f32 v{vR}, v{vR}, v{vR+1}
    v_add_f32 v{m}, v{m}, v{t}
    v_add_f32_dpp v{vR}, v{vR}, v{vR} row_ror:8 row_mask:0xf bank_mask:0xf
    v_add_f32_dpp v{m}, v{m}, v{m} row_ror:8 row_mask:0xf bank_mask:0xf
    v_rcp_f32 v{m}, v{m}
    s_mov_b32 exec_lo, 0x00ff00ff
    s_mov_b32 exec_hi, 0x00ff00ff
    v_mul_f32 v{vR}, v{vR}, v{m}
    v_cvt_pk_bf16_f32 v{vR}, v{vR}, v{vR}
    """)
    if dry:
        a(f"""
        s_cmp_eq_u32 s{sFb}, 0
        s_cbranch_scc1 L_store
        s_mov_b32 s{sFb}, 0
        s_mov_b64 exec, -1
        s_branch L_dry_done
        L_store:
        """)
    a(f"""
    global_store_short v{vOut}, v{vR}, s[14:15] {opol}
    L_fin:
    """)
    if stamps and PD > 1: a("s_waitcnt vmcnt(0)")
    if stamps:
        a(f"""
        s_mov_b64 exec, -1
        s_cmp_lt_u32 s{sSl}, {32-C}
        s_cbranch_scc0 L_st1
        s_memrealtime s[100:101]
        L_st1:
        s_getreg_b32 s98, hwreg(HW_REG_XCC_ID)
        s_getreg_b32 s99, hwreg(HW_REG_HW_ID)
        s_lshl_b32 s3, s2, 2
        s_add_u32 s3, s3, s{sJ}
        s_lshl_b32 s3, s3, 6
        s_add_u32 s3, s3, 0x20000000
        v_mov_b32 v{x0}, s3
        s_waitcnt lgkmcnt(0)
        """)
        for i in range(7):
            a(f"v_mov_b32 v{vV+2*i}, s{STR[i]}\nv_mov_b32 v{vV+2*i+1}, s{STR[i]+1}")
        a(f"v_mov_b32 v{vV+14}, s98\nv_mov_b32 v{vV+15}, s99\ns_mov_b64 exec, 1")
        for i in range(4):
            a(f"global_store_dwordx4 v{x0}, v[{vV+4*i}:{vV+4*i+3}], s[18:19] offset:{16*i}")
    a("L_end:\ns_endpgm")
    if diag:
        from diag import diag_kernel
        diag_kernel(a, 1024, **diag)
    def kd(name, nv, ns):
        a.raw(f""".amdhsa_kernel {name}
  .amdhsa_next_free_vgpr {nv}
  .amdhsa_next_free_sgpr {ns}
  .amdhsa_accum_offset {min(256,(nv+3)//4*4)}
  .amdhsa_group_segment_fixed_size 0
  .amdhsa_kernarg_size 64
  .amdhsa_user_sgpr_count 2
  .amdhsa_user_sgpr_kernarg_segment_ptr 1
  .amdhsa_system_sgpr_workgroup_id_x 1
  .amdhsa_float_denorm_mode_32 3
.end_amdhsa_kernel""")
    a.raw('.section .rodata,"a"\n.p2align 6')
    kd(KNAME, nvg, 102)
    if diag:
        a.raw(".p2align 6")
        kd("diag_kernel", 64, 32)
    return a.text()

if __name__ == "__main__":
    out = sys.argv[1]
    kw = eval("dict(" + (sys.argv[2] if len(sys.argv) > 2 else "") + ")")
    open(out, "w").write(gen(**kw))
```

```python
import sys, math, struct
from asmlib import Asm
KNAME = "standalone__paged_block_table_kv_radixattention__decode_kernel"
HDR = open("standalone__paged_block_table_kv_radixattention__decode.s.ref").read().split("; Override launch")[0]
C_SCALE = 0x3db8aa3b

vKo, vVo = 2, 3
vQ = 4
vD0 = 12
vM, vMC, vL, vAl = 18, 19, 20, 21
vAq = 22
vP = 26
vS = 28
vT = 44
vK = 52
vV = 84
vA = 116
vNeg = 180
vPo, vPm, vFl = 181, 182, 183
vX = 184
vTb = 192
vNo = 208
vPrA, vProg, vPrL, vSib = 210, 211, 212, 214
NVG = 216
sJ, sHead, sSl = 36, 37, 38
sBase = 43
sOff = 48
sIncL = 55
sMask = 56
sAccS, sAccL, sIncS, sTag = 68, 69, 70, 71
sIdx, sIt = 72, 73
sModd, sMhi = 74, 76
sSelLo, sSelHi, sC = 78, 79, 80
sN, sS, sNb0, sNb1, sC0, sC1 = 81, 82, 83, 84, 85, 86
sSt, sFb = 87, 42
OOB = 0xF0000000
PR_OFF, ML_OFF, DA_OFF = 0x9000, 0x10000, 0x40000
LDS_S, LDS_M, LDS_L, LDS_O = 16384, 16448, 16512, 20480
R = 7

DOC = r'''
; ---------------------------------------------------------------------------------------------------------------
;
; ---------------------------------------------------------------------------------------------------------------'''

def kslot(e, h): return vK + (2*e + h)*4
def vslot(h, e): return vV + (4*h + e)*4

def gen(pol="nt", stamps=False, lds=98304, diag=None, P0=8, B=1, blk=True, trace=None, nvg=NVG,
        xcc=(0.9, 0, 0.8, 0.0, 1.2, 0.1, 1.35, 0.25), base=-6.3, sens=8.0,
        gain=0.3, bias=-0.32, umax=0.75, umin=0.99, SP=8, XPL=14, dbg=False, pbf16=False, remap=False, PD=1, psl=4, opol='', prpol='', ppol='sc1', fb2=False, bias2=None, G=1, cu=0.08, he=0.45, w0=0.15, xclear=0, phys=True, psleep=0, mlfirst=True, mlk=8, phi=0.2, echk=True, cons=0.4, cpf=3, sst=False, dry=False, late=False, mid=(0, 0), spec=False, tlb=None, tpol='', cpol='', dclear=False, ml1=False, mle=False):
    a = Asm()
    C = 8
    STR = [28, 30, 32, 34, 88, 90, 100]
    def stamp(i):
        if (trace or sst) and i in (1, 2, 4, 5): return
        if dbg and i in (1, 2):
            a(f"s_mov_b64 s[{STR[i]}:{STR[i]+1}], 0"); return
        if stamps: a(f"s_memrealtime s[{STR[i]}:{STR[i]+1}]")
    def load(x):
        if x < 8:
            e, h = x >> 1, x & 1
            r = kslot(e, h)
            a(f"buffer_load_dwordx4 v[{r}:{r+3}], v{vKo}, s[20:23], s{sOff+e} offen offset:{h*256} {pol}")
        else:
            h, e = (x - 8) >> 2, (x - 8) & 3
            r = vslot(h, e)
            a(f"buffer_load_dwordx4 v[{r}:{r+3}], v{vVo}, s[24:27], s{sOff+e} offen offset:{h*256} {pol}")
        if x % SP == SP - 1:
            a(f"""
            v_add_u32 v{vProg}, 1, v{vProg}
            s_mov_b64 exec, 1
            global_store_{'short' if phys else 'dword'} v{vPrA}, v{vProg}, s[18:19] {prpol}
            s_mov_b64 exec, -1
            """)
        if x == XPL or (fb2 and x == XPL - 8):
            a(f"global_load_dwordx2 v[{vSib}:{vSib+1}], v{vPrL}, s[18:19] nt")
    def extra(y):
        y %= 16
        return (1 if y % SP == SP - 1 else 0) + (1 if (y == XPL or (fb2 and y == XPL - 8)) else 0)
    def cnt(target, now, paced=False):
        return sum((1 if y > target else 0) + extra(y) + (2 if (paced and tlb is not None and y == 3) else 0) for y in range(target, now))

    a.raw(HDR.rstrip("\n"))
    if diag:
        a.raw(f"; @launch kernel={KNAME} grid=(256,1,1) block=(256,1,1) lds={lds}")
        a.raw("; @launch kernel=diag_kernel grid=(1,1,1) block=(64,1,1) lds=0")
    else:
        a.raw(f"; @launch grid=(256,1,1) block=(256,1,1) lds={lds}")
    a.raw(DOC.strip("\n"))
    a.raw('.amdgcn_target "amdgcn-amd-amdhsa--gfx950"\n.text')
    a.raw(f".globl {KNAME}\n.p2align 8\n.type {KNAME},@function\n{KNAME}:")
    stamp(0)
    a("s_load_dwordx16 s[4:19], s[0:1], 0")
    if cpf == 1:
        a(f"""
        s_getpc_b64 s[92:93]
        v_lshlrev_b32 v{vNo+1}, 7, v0
        v_and_b32 v{vNo+1}, 0x1fff, v{vNo+1}
        global_load_dword v{vNo}, v{vNo+1}, s[92:93] {cpol}
        """)
    if cpf == 3:
        a(f"""
        s_getpc_b64 s[92:93]
        L_pc:
        v_lshlrev_b32 v{vNo+1}, 7, v0
        v_cmp_gt_u32 vcc, ((L_end-L_pc)>>7)+1, v0
        s_and_saveexec_b64 s[94:95], vcc
        s_cbranch_execz L_nopf
        global_load_dword v{vNo}, v{vNo+1}, s[92:93] {cpol}
        L_nopf:
        s_mov_b64 exec, -1
        """)
    if cpf == 2:
        a(f"""
        s_getpc_b64 s[92:93]
        v_lshlrev_b32 v{vNo+1}, 7, v0
        v_cmp_gt_u32 vcc, 64, v0
        s_and_saveexec_b64 s[94:95], vcc
        s_cbranch_execz L_nopf
        global_load_dword v{vNo}, v{vNo+1}, s[92:93] {cpol}
        L_nopf:
        s_mov_b64 exec, -1
        """)
    a(f"""
    s_cmp_ge_u32 s2, 256
    s_cbranch_scc1 L_end
    v_lshrrev_b32 v{vX}, 6, v0
    v_and_b32 v1, 63, v0
    s_lshr_b32 s{sHead}, s2, 3
    v_readfirstlane_b32 s{sJ}, v{vX}
    s_and_b32 s{sHead}, s{sHead}, 7
    """)
    if remap:
        a(f"""
        s_bfe_u32 s{sSl}, s2, 0x20001
        s_lshr_b32 s3, s2, 6
        s_lshl_b32 s3, s3, 2
        s_add_u32 s{sSl}, s{sSl}, s3
        s_andn2_b32 s3, 1, s2
        s_lshl_b32 s3, s3, 4
        s_add_u32 s{sSl}, s{sSl}, s3
        """)
    else:
        a(f"""
        s_and_b32 s{sSl}, s2, 7
        s_lshr_b32 s3, s2, 6
        s_lshl_b32 s3, s3, 3
        s_add_u32 s{sSl}, s{sSl}, s3
        """)
    a(f"""
    s_lshl_b32 s39, s{sHead}, 9
    v_lshrrev_b32 v{vX}, 4, v1
    v_bfe_u32 v{vX+1}, v1, 2, 2
    v_and_b32 v{vX+2}, 3, v1
    v_lshlrev_b32 v{vX+3}, 6, v{vX}
    v_lshl_add_u32 v{vKo}, v{vX+1}, 12, v{vX+3}
    v_lshl_add_u32 v{vKo}, v{vX+2}, 4, v{vKo}
    v_add_u32 v{vKo}, s39, v{vKo}
    v_and_b32 v{vX+4}, 15, v1
    v_lshlrev_b32 v{vVo}, 12, v{vX}
    v_lshl_add_u32 v{vVo}, v{vX+4}, 4, v{vVo}
    v_add_u32 v{vVo}, s39, v{vVo}
    v_lshl_add_u32 v{vX+5}, v{vX+1}, 4, v{vX+3}
    v_lshrrev_b32 v{vX+6}, 1, v{vX+2}
    v_lshl_add_u32 v{vX+5}, v{vX+6}, 13, v{vX+5}
    v_and_b32 v{vX+6}, 1, v1
    v_lshl_add_u32 v{vX+5}, v{vX+6}, 9, v{vX+5}
    s_lshl_b32 s39, s39, 1
    v_add_u32 v{vX+5}, s39, v{vX+5}
    v_lshlrev_b32 v{vX+6}, 5, v0
    v_add_u32 v{vX+7}, 0x2000, v{vX+6}
    s_lshl_b32 s3, s{sSl}, {4 if blk else 2}
    s_mov_b32 s22, 201326592
    s_mov_b32 s23, 0x20000
    s_mov_b32 s26, 201326592
    s_mov_b32 s27, 0x20000
    s_waitcnt lgkmcnt(0)
    {"s_memrealtime s[30:31]" if sst else ""}
    s_load_dwordx2 s[40:41], s[12:13], 0
    s_add_u32 s44, s10, s3
    s_addc_u32 s45, s11, 0
    """)
    if spec:
        pass
    elif blk:
        a(f"s_load_dwordx4 s[{sOff}:{sOff+3}], s[44:45], 0")
    else:
        for e in range(4): a(f"s_load_dword s{sOff+e}, s[44:45], {128*e}")
    RB = 512 if pbf16 else 1024
    lgRB = 9 if pbf16 else 10
    a(f"""
    s_load_dword s53, s[18:19], 0
    global_load_dwordx4 v[{vTb}:{vTb+3}], v{vX+6}, s[10:11] {tpol}
    global_load_dwordx4 v[{vTb+4}:{vTb+7}], v{vX+6}, s[10:11] offset:16 {tpol}
    global_load_dwordx4 v[{vTb+8}:{vTb+11}], v{vX+7}, s[10:11] {tpol}
    global_load_dwordx4 v[{vTb+12}:{vTb+15}], v{vX+7}, s[10:11] offset:16 {tpol}
    global_load_dwordx4 v[{vQ}:{vQ+3}], v{vX+5}, s[4:5] {tpol}
    global_load_dwordx4 v[{vQ+4}:{vQ+7}], v{vX+5}, s[4:5] offset:256 {tpol}
    s_mov_b32 s20, s6
    s_and_b32 s21, s7, 0xffff
    s_mov_b32 s24, s8
    s_and_b32 s25, s9, 0xffff
    """)
    def CLEAR(t):
        a(f"""
        v_mov_b64 v[{t}:{t+1}], -1
        v_mov_b64 v[{t+2}:{t+3}], -1
        v_add_u32 v{t+4}, {32*RB}, v{vPo}
        v_add_u32 v{t+5}, {64*RB}, v{vPo}
        v_add_u32 v{t+6}, {96*RB}, v{vPo}
        v_lshrrev_b32 v{t+7}, 3, v1
        v_mul_u32_u24 v{t+7}, {4096-128}, v{t+7}
        v_add_u32 v{t+7}, v{t+7}, v{vPm}
        """)
        for r in (vPo, t+4, t+5, t+6):
            if pbf16: a(f"global_store_dwordx2 v{r}, v[{t}:{t+1}], s[18:19] sc1")
            else: a(f"global_store_dwordx4 v{r}, v[{t}:{t+3}], s[18:19] sc1")
        a(f"""
        s_mov_b32 exec_hi, 0
        global_store_dwordx4 v{t+7}, v[{t}:{t+3}], s[18:19] sc1
        s_mov_b64 exec, -1
        """)
    def PUB():
        a(f"""
        s_lshl_b32 s3, s{sHead}, 2
        s_add_u32 s3, s3, s{sJ}
        s_lshl_b32 s3, s3, 5
        s_add_u32 s3, s3, s{sSl}
        s_lshl_b32 s39, s3, {lgRB}
        s_add_u32 s39, s39, {DA_OFF}
        v_lshlrev_b32 v{vPo}, {3 if pbf16 else 4}, v1
        v_add_u32 v{vPo}, s39, v{vPo}
        s_lshl_b32 s39, s3, 7
        s_add_u32 s39, s39, {ML_OFF}
        v_lshlrev_b32 v{vPm}, 4, v1
        v_add_u32 v{vPm}, s39, v{vPm}
        """)
        if not dclear:
            a(f"s_cmp_lg_u32 s{sJ}, 0\ns_cbranch_scc1 L_noclear")
            CLEAR(vS)
            a("L_noclear:")
        a(f"""
        """)
    if not late: PUB()
    a(f"""
    s_lshl_b32 s46, s{sJ}, 14
    """)
    if phys:
        a(f"""
        s_getreg_b32 s3, hwreg(HW_REG_XCC_ID, 0, 3)
        s_lshl_b32 s3, s3, 9
        s_add_u32 s3, s3, {PR_OFF}
        v_lshlrev_b32 v{vPrL}, 3, v1
        v_add_u32 v{vPrL}, s3, v{vPrL}
        s_getreg_b32 s39, hwreg(HW_REG_HW_ID, 13, 2)
        s_lshl_b32 s39, s39, 7
        s_add_u32 s3, s3, s39
        s_getreg_b32 s39, hwreg(HW_REG_HW_ID, 8, 4)
        s_lshl_b32 s39, s39, 3
        s_add_u32 s3, s3, s39
        s_lshl_b32 s39, s{sJ}, 1
        s_add_u32 s3, s3, s39
        v_mov_b32 v{vPrA}, s3
        v_mov_b32 v{vProg}, 0x5a00
        """)
    else:
        a(f"""
        s_and_b32 s3, s2, 7
        s_lshl_b32 s3, s3, 9
        s_add_u32 s3, s3, {PR_OFF}
        v_lshlrev_b32 v{vPrL}, 3, v1
        v_add_u32 v{vPrL}, s3, v{vPrL}
        s_lshr_b32 s39, s2, 3
        s_lshl_b32 s39, s39, 2
        s_add_u32 s39, s39, s{sJ}
        s_lshl_b32 s39, s39, 2
        s_add_u32 s3, s3, s39
        v_mov_b32 v{vPrA}, s3
        v_mov_b32 v{vProg}, 0
        """)
    if not spec:
        a(f"""
        s_waitcnt lgkmcnt(0)
        """)
        for e in range(4):
            a(f"s_lshl_b32 s{sOff+e}, s{sOff+e}, 16\ns_add_u32 s{sOff+e}, s{sOff+e}, s46")
        a(f"""
        s_cmp_le_i32 s40, 0
        s_cselect_b32 s{sC0}, 0x8000, s40
        s_cmp_gt_u32 s{sC0}, 2047
        s_cselect_b32 s47, 1, 0
        s_cbranch_scc0 L_noearly
        """)
        if sst: a("s_memrealtime s[32:33]")
        for x in range(P0): load(x)
        YOUNG = cnt(-1, P0) - extra(-1)
        a("s_branch L_early_done\nL_noearly:")
        for i in range(0, 32, 2): a(f"v_mov_b64 v[{vV+i}:{vV+i+1}], 0")
        a("s_waitcnt vmcnt(0)\nL_early_done:")
        if late: PUB()
    else:
        assert blk and not late
        a(f"""
        s_lshl_b32 s3, s{sSl}, 18
        s_add_u32 s{sOff}, s3, s46
        s_add_u32 s{sOff+1}, s{sOff}, 0x10000
        s_add_u32 s{sOff+2}, s{sOff}, 0x20000
        s_add_u32 s{sOff+3}, s{sOff}, 0x30000
        s_mov_b32 s47, 1
        """)
        if sst: a("s_memrealtime s[32:33]")
        for x in range(P0): load(x)
        YOUNG = cnt(-1, P0) - extra(-1)
        a(f"s_waitcnt lgkmcnt(0)\ns_cmp_le_i32 s40, 0\ns_cselect_b32 s{sC0}, 0x8000, s40")
    U = lambda lag: int(round(lag / sens * 2**24))
    a(f"""
    s_add_u32 s52, s53, 1
    s_max_u32 s52, s52, 1
    s_mov_b32 s54, s52
    s_mov_b32 s53, 0
    s_lshl_b32 s3, s2, 2
    s_add_u32 s3, s3, s{sJ}
    s_cmp_lg_u32 s3, 0
    s_cbranch_scc1 L_nocas
    s_atomic_cmpswap s[52:53], s[16:17], 0x0
    L_nocas:
    s_mov_b32 s64, 0x33333333
    s_mov_b32 s65, 0x33333333
    s_mov_b32 s66, 0xcccccccc
    s_mov_b32 s67, 0xcccccccc
    s_cmp_le_i32 s40, 0
    s_cselect_b64 s[64:65], 0, s[64:65]
    s_cmp_le_i32 s41, 0
    s_cselect_b32 s{sC1}, 0x8000, s41
    s_cselect_b64 s[66:67], 0, s[66:67]
    s_or_b64 s[64:65], s[64:65], s[66:67]
    s_min_u32 s{sC0}, s{sC0}, 0x8000
    s_min_u32 s{sC1}, s{sC1}, 0x8000
    s_add_u32 s{sNb0}, s{sC0}, 15
    s_lshr_b32 s{sNb0}, s{sNb0}, 4
    s_add_u32 s{sNb1}, s{sC1}, 15
    s_lshr_b32 s{sNb1}, s{sNb1}, 4
    """)
    for i in range(0, 64, 2): a(f"v_mov_b64 v[{vA+i}:{vA+i+1}], 0")
    a(f"""
    v_mov_b64 v[{vP}:{vP+1}], 0
    v_mov_b64 v[{vAq}:{vAq+1}], 0
    v_mov_b64 v[{vAq+2}:{vAq+3}], 0
    v_and_b32 v{vFl}, 31, v1
    s_lshl_b32 s3, s{sHead}, 5
    v_add_u32 v{vFl}, s3, v{vFl}
    v_lshlrev_b32 v{vFl}, 7, v{vFl}
    v_mov_b32 v{vL}, 0
    v_mov_b32 v{vM}, 0xf149f2ca
    v_mov_b32 v{vNeg}, 0xff800000
    s_mov_b32 s{sC}, {C_SCALE}
    v_mul_f32 v{vMC}, s{sC}, v{vM}
    s_mov_b32 s{sModd}, 0xf0f0f0f0
    s_mov_b32 s{sModd+1}, 0xf0f0f0f0
    s_mov_b32 s{sMhi}, 0xff00ff00
    s_mov_b32 s{sMhi+1}, 0xff00ff00
    s_mov_b32 s{sSelLo}, 0x05040100
    s_mov_b32 s{sSelHi}, 0x07060302
    s_getreg_b32 s3, hwreg(HW_REG_XCC_ID)
    s_and_b32 s3, s3, 7
    s_mov_b32 s{sBase}, {U(xcc[0] + base)}
    """)
    for x in range(1, 8):
        if U(xcc[x] + base) != U(xcc[0] + base):
            a(f"s_cmp_eq_u32 s3, {x}\ns_cselect_b32 s{sBase}, {U(xcc[x] + base)}, s{sBase}")
    if cu:
        a(f"s_getreg_b32 s3, hwreg(HW_REG_HW_ID, 8, 4)\ns_mul_i32 s3, s3, {U(cu)}\ns_add_u32 s{sBase}, s{sBase}, s3")
    if he:
        a(f"s_bitcmp0_b32 s{sHead}, 0\ns_cselect_b32 s3, {U(he)}, 0\ns_add_u32 s{sBase}, s{sBase}, s3")
    if cons:
        a(f"s_cmp_ge_u32 s{sSl}, 24\ns_cselect_b32 s3, {U(cons)}, 0\ns_add_u32 s{sBase}, s{sBase}, s3")
    if w0:
        a(f"s_cmp_eq_u32 s{sJ}, 0\ns_cselect_b32 s3, {U(w0)}, 0\ns_add_u32 s{sBase}, s{sBase}, s3")
    a(f"""
    s_max_i32 s{sIncL}, s{sBase}, 0
    s_lshl_b32 s{sIncL}, s{sIncL}, 8
    s_sub_u32 s3, 0, s{sBase}
    s_max_i32 s{sIncS}, s3, 0
    s_lshl_b32 s{sIncS}, s{sIncS}, 8
    s_mov_b32 s{sFb}, 0
    s_cmp_lg_u32 s{sJ}, 0
    s_cbranch_scc1 L_w1
    s_waitcnt vmcnt({YOUNG+(0 if dclear else 5)})
    s_branch L_w2
    L_w1:
    s_waitcnt vmcnt({YOUNG})
    L_w2:
    """)
    stamp(1)
    if mid[0]:
        a("s_cmp_eq_u32 s47, 0\ns_cbranch_scc1 L_midA")
        for x in range(P0, P0 + mid[0]): load(x)
        a("L_midA:")
    a(f"""
    ds_write_b128 v{vX+6}, v[{vTb}:{vTb+3}]
    ds_write_b128 v{vX+6}, v[{vTb+4}:{vTb+7}] offset:16
    ds_write_b128 v{vX+7}, v[{vTb+8}:{vTb+11}]
    ds_write_b128 v{vX+7}, v[{vTb+12}:{vTb+15}] offset:16
    """)
    mk = [56, 58, 60, 62, 92, 94, 96, 98]
    for k in range(8):
        a(f"v_cmp_eq_u32 s[{mk[k]}:{mk[k]+1}], v{vTb+k}, v{vTb+8+k}")
    for k in range(1, 8):
        a(f"s_and_b64 s[{mk[k]}:{mk[k]+1}], s[{mk[k]}:{mk[k]+1}], s[{mk[k-1]}:{mk[k-1]+1}]")
    a(f"s_ff0_i32_b64 s3, s[{mk[7]}:{mk[7]+1}]")
    a(f"s_lshl_b32 s39, s{sJ}, 6\ns_add_u32 s39, s39, s3\ns_lshl_b32 s39, s39, 3")
    for k in range(7):
        a(f"s_bitcmp1_b64 s[{mk[k]}:{mk[k]+1}], s3\ns_addc_u32 s39, s39, 0")
    a(f"""
    s_cmp_lt_i32 s3, 0
    s_cselect_b32 s39, 2048, s39
    s_lshl_b32 s3, s{sJ}, 2
    v_mov_b32 v{vX}, s3
    v_mov_b32 v{vX+1}, s39
    ds_write_b32 v{vX}, v{vX+1} offset:{LDS_S}
    """)
    for i in range(8): a(f"v_cndmask_b32 v{vQ+i}, 0, v{vQ+i}, s[64:65]")
    a(f"""
    v_mov_b32 v{vX}, 0
    s_cmp_eq_u32 s{sJ}, 0
    s_cselect_b32 s{sSt}, {5 if dclear else 4}, 0
    s_waitcnt lgkmcnt(0)
    s_barrier
    ds_read_b128 v[{vTb}:{vTb+3}], v{vX} offset:{LDS_S}
    """)
    if mid[1]:
        a("s_cmp_eq_u32 s47, 0\ns_cbranch_scc1 L_midB")
        for x in range(P0 + mid[0], P0 + mid[0] + mid[1]): load(x)
        a("L_midB:")
    a(f"""
    s_waitcnt lgkmcnt(0)
    v_min_u32 v{vTb}, v{vTb}, v{vTb+1}
    v_min3_u32 v{vTb}, v{vTb}, v{vTb+2}, v{vTb+3}
    s_min_u32 s3, s{sNb0}, s{sNb1}
    v_readfirstlane_b32 s{sS}, v{vTb}
    s_min_u32 s{sS}, s{sS}, s3
    s_add_u32 s{sN}, s{sNb0}, s{sNb1}
    s_sub_u32 s{sN}, s{sN}, s{sS}
    s_sub_u32 s39, s{sS}, s{sNb0}
    s_lshl_b32 s66, s{sJ}, 2
    s_sub_u32 s64, s{sC0}, s66
    s_sub_u32 s65, s{sC1}, s66
    """)
    for r in range(2):
        b = vTb + r*8
        if not blk:
            a(f"""
            v_lshlrev_b32 v{b}, 5, v1
            s_add_u32 s3, s{sSl}, {r*2048}
            v_add_u32 v{b}, s3, v{b}
            """)
        else:
            a(f"""
            v_add_u32 v{b+4}, {64*r}, v1
            s_lshr_b32 s3, s{sN}, 7
            s_lshl_b32 s3, s3, 2
            v_cmp_gt_u32 vcc, s3, v{b+4}
            v_lshlrev_b32 v{b}, 5, v{b+4}
            v_and_b32 v{b+5}, 0xffffff80, v{b}
            v_add_u32 v{b}, s{sSl}, v{b}
            v_and_b32 v{b+4}, 3, v{b+4}
            s_lshl_b32 s3, s{sSl}, 2
            v_add3_u32 v{b+5}, v{b+5}, s3, v{b+4}
            v_cndmask_b32 v{b}, v{b}, v{b+5}, vcc
            """)
            if G > 1:
                W = 128 // G; lgW = int(math.log2(W)); SG = 32 // G
                a(f"""
                v_add_u32 v{b+4}, {64*r}, v1
                s_lshr_b32 s3, s{sN}, 7
                s_lshl_b32 s44, s3, 2
                v_cmp_gt_u32 vcc, s44, v{b+4}
                v_cmp_lt_u32 s[92:93], 3, v{b+4}
                s_sub_u32 s3, s3, 1
                s_lshr_b32 s44, s{sSl}, {int(math.log2(SG))}
                s_mul_i32 s3, s3, s44
                s_lshl_b32 s3, s3, {lgW}
                s_and_b32 s44, s{sSl}, {SG-1}
                s_lshl_b32 s44, s44, 2
                s_add_u32 s3, s3, s44
                s_add_u32 s3, s3, {128 - W}
                s_and_b64 vcc, vcc, s[92:93]
                v_lshrrev_b32 v{b+5}, 2, v{b+4}
                v_lshlrev_b32 v{b+5}, {lgW}, v{b+5}
                v_and_b32 v{b+4}, 3, v{b+4}
                v_add3_u32 v{b+5}, v{b+5}, s3, v{b+4}
                v_cndmask_b32 v{b}, v{b}, v{b+5}, vcc
                """)
        a(f"""
        v_cmp_gt_u32 s[{56+r*4}:{57+r*4}], s{sNb0}, v{b}
        v_add_u32 v{b+1}, s39, v{b}
        v_cmp_gt_u32 s[{58+r*4}:{59+r*4}], s{sN}, v{b}
        v_cndmask_b32 v{b+1}, v{b+1}, v{b}, s[{56+r*4}:{57+r*4}]
        v_min_u32 v{b+2}, 2047, v{b+1}
        v_lshlrev_b32 v{b+2}, 2, v{b+2}
        v_add_u32 v{b+4}, 0x2000, v{b+2}
        v_cndmask_b32 v{b+2}, v{b+4}, v{b+2}, s[{56+r*4}:{57+r*4}]
        ds_read_b32 v{b+3}, v{b+2}
        """)
    a(f"""
    v_mov_b32 v{vX+4}, 0x3333
    v_mov_b32 v{vX+5}, 0x33333333
    v_mov_b32 v{vX+6}, 0xcccc
    v_mov_b32 v{vX+7}, 0xcccccccc
    """)
    for r in range(2):
        b = vTb + r*8
        isA = f"s[{56+r*4}:{57+r*4}]"; valid = f"s[{58+r*4}:{59+r*4}]"
        d = vD0 + 3*r
        a(f"""
        v_lshlrev_b32 v{b+4}, 4, v{b+1}
        v_sub_u32 v{b+5}, s64, v{b+4}
        v_sub_u32 v{b+6}, s65, v{b+4}
        v_cmp_gt_u32 vcc, s{sS}, v{b}
        s_andn2_b64 s[92:93], {valid}, {isA}
        s_or_b64 s[92:93], s[92:93], vcc
        v_cndmask_b32 v{b+5}, 0, v{b+5}, {isA}
        v_cndmask_b32 v{b+6}, 0, v{b+6}, s[92:93]
        v_cmp_lt_i32 s[94:95], 0, v{b+5}
        v_cmp_lt_i32 s[96:97], 1, v{b+5}
        v_cmp_lt_i32 s[98:99], 2, v{b+5}
        v_cmp_lt_i32 vcc, 3, v{b+5}
        v_cndmask_b32 v{d+1}, 0, v{vX+4}, s[94:95]
        v_cndmask_b32 v{d+1}, v{d+1}, v{vX+5}, s[96:97]
        v_cndmask_b32 v{d+2}, 0, v{vX+4}, s[98:99]
        v_cndmask_b32 v{d+2}, v{d+2}, v{vX+5}, vcc
        v_cmp_lt_i32 s[94:95], 0, v{b+6}
        v_cmp_lt_i32 s[96:97], 1, v{b+6}
        v_cmp_lt_i32 s[98:99], 2, v{b+6}
        v_cmp_lt_i32 vcc, 3, v{b+6}
        v_cndmask_b32 v{vX+2}, 0, v{vX+6}, s[94:95]
        v_cndmask_b32 v{vX+2}, v{vX+2}, v{vX+7}, s[96:97]
        v_cndmask_b32 v{vX+3}, 0, v{vX+6}, s[98:99]
        v_cndmask_b32 v{vX+3}, v{vX+3}, v{vX+7}, vcc
        v_or_b32 v{d+1}, v{d+1}, v{vX+2}
        v_or_b32 v{d+2}, v{d+2}, v{vX+3}
        s_waitcnt lgkmcnt({1-r})
        v_lshlrev_b32 v{b+3}, 16, v{b+3}
        v_cmp_ne_u32 vcc, 0, v{d+1}
        v_add_u32 v{b+3}, s46, v{b+3}
        v_mov_b32 v{vX}, {OOB}
        v_cndmask_b32 v{d}, v{vX}, v{b+3}, vcc
        """)
    a(f"""
    s_sub_u32 s3, s{sN}, s{sSl}
    s_add_u32 s3, s3, 31
    s_ashr_i32 s3, s3, 5
    s_max_i32 s3, s3, 1
    s_lshl_b32 s39, s3, 5
    s_sub_u32 s39, s39, s{sN}
    s_mul_i32 s39, s39, {int(round(2 * phi * gain * SP / 4 / 128 * 2**24))}
    s_add_u32 s{sBase}, s{sBase}, s39
    s_add_u32 s3, s3, 3
    s_lshr_b32 s{sIt}, s3, 2
    s_mov_b32 s{sIdx}, 0
    s_lshl_b32 s{sAccL}, s{sJ}, 30
    s_mov_b32 s{sAccS}, s{sAccL}
    """)
    def fetch_off():
        a(f"""
        v_readlane_b32 s{sOff}, v{vD0}, s{sIdx}
        s_add_u32 s3, s{sIdx}, 1
        v_readlane_b32 s{sOff+1}, v{vD0}, s3
        s_add_u32 s3, s{sIdx}, 2
        v_readlane_b32 s{sOff+2}, v{vD0}, s3
        s_add_u32 s3, s{sIdx}, 3
        v_readlane_b32 s{sOff+3}, v{vD0}, s3
        """)
    def fetch_masks():
        for e in range(4):
            a(f"v_readlane_b32 s{sMask+2*e}, v{vD0+1}, s{sIdx}")
            a(f"v_readlane_b32 s{sMask+2*e+1}, v{vD0+2}, s{sIdx}")
            a(f"s_add_u32 s{sIdx}, s{sIdx}, 1")
    def next_off(tag):
        a(f"""
        s_cmp_lg_u32 s{sIdx}, 64
        s_cbranch_scc1 L_noswap{tag}
        v_mov_b32 v{vD0}, v{vD0+3}
        v_mov_b32 v{vD0+1}, v{vD0+4}
        v_mov_b32 v{vD0+2}, v{vD0+5}
        s_mov_b32 s{sIdx}, 0
        L_noswap{tag}:
        """)
        fetch_off()
    if spec:
        a(f"s_mov_b64 s[92:93], s[{sOff}:{sOff+1}]\ns_mov_b64 s[94:95], s[{sOff+2}:{sOff+3}]")
    fetch_off()
    stamp(2)
    if sst: a("s_memrealtime s[88:89]")
    if spec:
        a(f"""
        s_xor_b64 s[92:93], s[92:93], s[{sOff}:{sOff+1}]
        s_xor_b64 s[94:95], s[94:95], s[{sOff+2}:{sOff+3}]
        s_or_b64 s[92:93], s[92:93], s[94:95]
        s_cbranch_scc0 L_spec_ok
        s_waitcnt vmcnt(0)
        """)
        for i in range(0, 32, 2): a(f"v_mov_b64 v[{vV+i}:{vV+i+1}], 0")
        a(f"v_mov_b32 v{vProg}, 0x5a00\ns_branch L_burst")
    else:
        a(f"s_cmp_eq_u32 s47, 1\ns_nop 3\ns_cbranch_scc0 L_burst")
    hist_jump = list(a.hist)
    if spec: a("L_spec_ok:")
    for x in range(P0 + mid[0] + mid[1], 16): load(x)
    fetch_masks()
    a("s_branch L_burst_qk")
    hist_jump2 = list(a.hist)
    def QK(e):
        d = vS + 4*e
        a(f"v_mfma_f32_16x16x32_bf16 v[{d}:{d+3}], v[{kslot(e,0)}:{kslot(e,0)+3}], v[{vQ}:{vQ+3}], 0")
        a(f"v_mfma_f32_16x16x32_bf16 v[{d}:{d+3}], v[{kslot(e,1)}:{kslot(e,1)+3}], v[{vQ+4}:{vQ+7}], v[{d}:{d+3}]")
    def RED(e):
        d = vS + 4*e
        a(f"""
        v_cndmask_b32 v{d}, v{d}, v{d+1}, s[{sModd}:{sModd+1}]
        v_cndmask_b32 v{d+2}, v{d+2}, v{d+3}, s[{sModd}:{sModd+1}]
        v_cndmask_b32 v{d}, v{d}, v{d+2}, s[{sMhi}:{sMhi+1}]
        v_add_f32_dpp v{d+1}, v{d}, v{d} row_ror:4 row_mask:0xf bank_mask:0xf
        v_add_f32_dpp v{d}, v{d+1}, v{d+1} row_ror:8 row_mask:0xf bank_mask:0xf
        v_cndmask_b32 v{d}, v{vNeg}, v{d}, s[{sMask+2*e}:{sMask+2*e+1}]
        """)
    def SM(wave_max):
        T = [vS + 4*e for e in range(4)]
        a(f"""
        v_max3_f32 v{vM}, v{vM}, v{T[0]}, v{T[1]}
        v_max3_f32 v{vM}, v{vM}, v{T[2]}, v{T[3]}
        """)
        if wave_max:
            a(f"""
            v_mov_b32 v{vX}, v{vM}
            v_permlane32_swap_b32 v{vM}, v{vX}
            v_max_f32 v{vM}, v{vM}, v{vX}
            v_mov_b32 v{vX}, v{vM}
            v_permlane16_swap_b32 v{vM}, v{vX}
            v_max_f32 v{vM}, v{vM}, v{vX}
            """)
        a(f"""
        v_mul_f32 v{vX}, s{sC}, v{vM}
        v_sub_f32 v{vAl}, v{vMC}, v{vX}
        v_fma_f32 v{T[0]}, v{T[0]}, s{sC}, -v{vX}
        v_fma_f32 v{T[1]}, v{T[1]}, s{sC}, -v{vX}
        v_fma_f32 v{T[2]}, v{T[2]}, s{sC}, -v{vX}
        v_fma_f32 v{T[3]}, v{T[3]}, s{sC}, -v{vX}
        v_exp_f32 v{vAl}, v{vAl}
        v_exp_f32 v{T[0]}, v{T[0]}
        v_exp_f32 v{T[1]}, v{T[1]}
        v_exp_f32 v{T[2]}, v{T[2]}
        v_exp_f32 v{T[3]}, v{T[3]}
        v_mov_b32 v{vMC}, v{vX}
        v_mov_b32_dpp v{vAq}, v{vAl} quad_perm:[0,0,0,0] row_mask:0xf bank_mask:0xf
        v_mov_b32_dpp v{vAq+1}, v{vAl} quad_perm:[1,1,1,1] row_mask:0xf bank_mask:0xf
        v_mov_b32_dpp v{vAq+2}, v{vAl} quad_perm:[2,2,2,2] row_mask:0xf bank_mask:0xf
        v_mov_b32_dpp v{vAq+3}, v{vAl} quad_perm:[3,3,3,3] row_mask:0xf bank_mask:0xf
        v_add_f32 v{vX}, v{T[0]}, v{T[1]}
        v_add_f32 v{vX+1}, v{T[2]}, v{T[3]}
        v_cvt_pk_bf16_f32 v{vP}, v{T[0]}, v{T[1]}
        v_cvt_pk_bf16_f32 v{vP+1}, v{T[2]}, v{T[3]}
        v_add_f32 v{vX}, v{vX}, v{vX+1}
        v_fma_f32 v{vL}, v{vL}, v{vAl}, v{vX}
        """)
    def RS(t0, t1):
        for t in range(t0, t1):
            r = vA + 4*t
            a(f"v_pk_mul_f32 v[{r}:{r+1}], v[{r}:{r+1}], v[{vAq}:{vAq+1}]")
            a(f"v_pk_mul_f32 v[{r+2}:{r+3}], v[{r+2}:{r+3}], v[{vAq+2}:{vAq+3}]")
    def PV(h, d0, d1):
        def perm(dd):
            t = vT + 2*(dd & 3); rr = dd >> 1; sel = sSelHi if dd & 1 else sSelLo
            a(f"v_perm_b32 v{t}, v{vslot(h,1)+rr}, v{vslot(h,0)+rr}, s{sel}")
            a(f"v_perm_b32 v{t+1}, v{vslot(h,3)+rr}, v{vslot(h,2)+rr}, s{sel}")
        def mm(dd):
            t = vT + 2*(dd & 3); r = vA + 4*(8*h + dd)
            a(f"v_mfma_f32_4x4x4_16b_bf16 v[{r}:{r+3}], v[{vP}:{vP+1}], v[{t}:{t+1}], v[{r}:{r+3}]")
        perm(d0)
        for dd in range(d0, d1):
            if dd + 1 < d1: perm(dd + 1)
            mm(dd)
    def FB(k=0):
        G = int(round(gain * SP / 4 / 128 * 2**24)); B0 = int(round((bias if k == 0 or bias2 is None else bias2) * 128))
        back = sum(1 for y in range(XPL + 1 - 8*k, 16 + 5 - 8*k) if (y % 16) % SP == SP - 1)
        a(f"""
        s_cmp_eq_u32 s{sFb}, 0
        s_mov_b32 s{sFb}, 1
        s_cbranch_scc1 L_nofb{k}
        """)
        if phys:
            a(f"""
            v_readfirstlane_b32 s3, v{vProg}
            s_mov_b32 s44, 0x00100010
            s_sub_u32 s3, {8 + back}, s3
            s_pack_ll_b32_b16 s3, s3, s3
            s_mov_b32 s45, 0x00040004
            v_pk_add_u16 v{vSib}, v{vSib}, s3
            v_pk_add_u16 v{vSib+1}, v{vSib+1}, s3
            s_mov_b32 s47, 0xfff8fff8
            v_pk_min_u16 v{vSib}, v{vSib}, s44
            v_pk_min_u16 v{vSib+1}, v{vSib+1}, s44
            v_pk_lshrrev_b16 v{vX}, s45, v{vSib}
            v_pk_lshrrev_b16 v{vX+1}, s45, v{vSib+1}
            v_pk_mad_u16 v{vSib}, v{vX}, s47, v{vSib}
            v_pk_mad_u16 v{vSib+1}, v{vX+1}, s47, v{vSib+1}
            v_pk_add_u16 v{vSib}, v{vSib}, v{vSib+1}
            s_mov_b32 s3, {B0 - 256*8}
            v_lshrrev_b32 v{vSib+1}, 16, v{vSib}
            v_and_b32 v{vSib}, 0xffff, v{vSib}
            v_add_u32 v{vSib}, v{vSib}, v{vSib+1}
            v_add_u32_dpp v{vSib}, v{vSib}, v{vSib} row_ror:1 row_mask:0xf bank_mask:0xf
            v_add_u32_dpp v{vSib}, v{vSib}, v{vSib} row_ror:2 row_mask:0xf bank_mask:0xf
            """)
        else:
            a(f"""
            v_add_u32 v{vSib}, v{vSib}, v{vSib+1}
            v_readfirstlane_b32 s3, v{vProg}
            v_add_u32_dpp v{vSib}, v{vSib}, v{vSib} row_ror:1 row_mask:0xf bank_mask:0xf
            s_sub_u32 s3, s3, {back}
            s_lshl_b32 s3, s3, 7
            v_add_u32_dpp v{vSib}, v{vSib}, v{vSib} row_ror:2 row_mask:0xf bank_mask:0xf
            s_sub_u32 s3, {B0}, s3
            """)
        a(f"""
        v_add_u32_dpp v{vSib}, v{vSib}, v{vSib} row_ror:4 row_mask:0xf bank_mask:0xf
        v_add_u32_dpp v{vSib}, v{vSib}, v{vSib} row_ror:8 row_mask:0xf bank_mask:0xf
        v_readlane_b32 s39, v{vSib}, 0
        v_readlane_b32 s44, v{vSib}, 16
        v_readlane_b32 s45, v{vSib}, 32
        v_readlane_b32 s47, v{vSib}, 48
        s_add_u32 s3, s3, s39
        s_add_u32 s44, s44, s45
        s_add_u32 s3, s3, s47
        s_add_u32 s3, s3, s44
        s_max_i32 s3, s3, -1024
        s_min_i32 s3, s3, 1024
        """)
        if dbg:
            a(f"s_add_u32 s30, s30, s3\ns_mul_i32 s39, s3, s3\ns_add_u32 s32, s32, s39")
        a(f"""
        s_mul_i32 s3, s3, {G}
        s_add_u32 s3, s3, s{sBase}
        s_min_i32 s3, s3, {int(umax * 2**24)}
        s_max_i32 s3, s3, {-int(umin * 2**24)}
        s_max_i32 s{sIncL}, s3, 0
        s_sub_u32 s3, 0, s3
        s_max_i32 s{sIncS}, s3, 0
        s_lshl_b32 s{sIncL}, s{sIncL}, 8
        s_lshl_b32 s{sIncS}, s{sIncS}, 8
        L_nofb{k}:
        """)
    def flag_store():
        a(f"""
        s_lshl_b32 s3, s{sHead}, 5
        s_add_u32 s3, s3, s{sSl}
        s_lshl_b32 s3, s3, 7
        v_lshlrev_b32 v{vTb}, 4, v1
        v_add_u32 v{vTb}, s3, v{vTb}
        v_mov_b32 v{vTb+4}, s{sTag}
        v_mov_b32 v{vTb+5}, s{sTag}
        v_mov_b32 v{vTb+6}, s{sTag}
        v_mov_b32 v{vTb+7}, s{sTag}
        s_cmp_eq_u32 s3, 0
        s_movk_i32 s3, 0xff
        s_cselect_b32 s3, s3, 0
        s_or_b32 exec_lo, s3, 0xff00
        s_mov_b32 exec_hi, 0
        global_store_dwordx4 v{vTb}, v[{vTb+4}:{vTb+7}], s[18:19] sc1
        s_mov_b64 exec, -1
        """)
    def TAGSM():
        a(f"""
        s_cmp_eq_u32 s{sSt}, 0
        s_cbranch_scc1 L_st_done
        s_cmp_eq_u32 s{sSt}, 5
        s_cbranch_scc1 L_st_clr
        s_cmp_eq_u32 s{sSt}, 4
        s_cbranch_scc1 L_st_load
        s_cmp_eq_u32 s{sSt}, 3
        s_cbranch_scc1 L_st_tag
        s_cmp_eq_u32 s{sSt}, 2
        s_cbranch_scc1 L_st_fl
        v_cmp_ne_u32 vcc, s{sTag}, v{vNo+1}
        s_cmp_eq_u64 vcc, 0
        s_cselect_b32 s{sSt}, 0, 2
        s_branch L_st_done
        L_st_fl:
        global_load_dword v{vNo+1}, v{vFl}, s[18:19] offset:128 sc1
        s_mov_b32 s{sSt}, 1
        s_branch L_st_done
        L_st_tag:
        v_readfirstlane_b32 s{sTag}, v{vNo}
        s_cmp_eq_u32 s{sTag}, 0
        s_cbranch_scc1 L_st_load
        """)
        flag_store()
        a(f"""
        s_cmp_lt_u32 s{sSl}, {32-C}
        s_cselect_b32 s{sSt}, 0, 2
        s_branch L_st_done
        L_st_clr:
        """)
        if dclear: CLEAR(vTb+8)
        a(f"""
        L_st_load:
        v_mov_b32 v{vTb}, 0
        global_load_dword v{vNo}, v{vTb}, s[16:17] sc1
        s_mov_b32 s{sSt}, 3
        L_st_done:
        """)
    sched = {0: [lambda: RS(0, 8)], 1: [fetch_masks], 2: [lambda: PV(0, 0, 4)], 3: [lambda: PV(0, 4, 8)], 4: [lambda: RS(8, 16)], 5: [FB],
             6: [lambda: PV(1, 0, 4)], 7: [lambda: PV(1, 4, 8)], 8: [lambda: QK(0), TAGSM], 9: [lambda: RED(0)], 10: [lambda: QK(1)],
             11: [lambda: RED(1)], 12: [lambda: QK(2)], 13: [lambda: RED(2)], 14: [lambda: QK(3), lambda: RED(3)],
             15: [lambda: SM(False)]}
    if fb2: sched[12].append(lambda: FB(1))
    assert (XPL - 16) <= 5 - R
    a.raw("; ---- paced tile: 16 issue points, each waits for the window (5/6/7 deep) and issues one load\n.p2align 6")
    a("L_loop:")
    for x in range(16):
        a(f"""
        s_add_u32 s{sAccL}, s{sAccL}, s{sIncL}
        s_cbranch_scc1 L_lax{x}
        s_add_u32 s{sAccS}, s{sAccS}, s{sIncS}
        s_cbranch_scc0 L_nrm{x}
        s_waitcnt vmcnt({cnt(x-(R-2), x, True)})
        L_nrm{x}:
        s_waitcnt vmcnt({cnt(x-(R-1), x, True)})
        L_lax{x}:
        s_waitcnt vmcnt({cnt(x-R, x, True)})
        """)
        load(x)
        if tlb is not None and x == 1:
            a(f"s_add_u32 s3, s{sIdx}, s{sJ}\ns_and_b32 s3, s3, 63\nv_readlane_b32 s66, v{vD0}, s3")
        if tlb is not None and x == 3:
            a(f"""
            s_mov_b64 exec, 1
            buffer_load_dword v{vNo+8}, v{vKo}, s[20:23], s66 offen {tlb}
            buffer_load_dword v{vNo+9}, v{vKo}, s[24:27], s66 offen {tlb}
            s_mov_b64 exec, -1
            """)
        if x == 15: next_off(0)
        for t in sched[x]: t()
    if sst:
        a(f"s_cmp_lg_u32 s{sIt}, 18\ns_cbranch_scc1 L_tr5\ns_memrealtime s[90:91]\nL_tr5:")
    if trace:
        for k, i in zip(trace, (1, 2, 4, 5)):
            a(f"s_cmp_lg_u32 s{sIt}, {k}\ns_cbranch_scc1 L_tr{i}\ns_memrealtime s[{STR[i]}:{STR[i]+1}]\nL_tr{i}:")
    a(f"s_sub_u32 s{sIt}, s{sIt}, 1\ns_cmp_gt_u32 s{sIt}, {B}\ns_cbranch_scc1 L_loop")
    a.check_backedge("L_loop")
    a("L_burst:")
    for x in range(8): load(x)
    fetch_masks()
    RS(0, 16)
    a(f"s_waitcnt vmcnt({cnt(11-16, 8)})")
    PV(0, 0, 8)
    for x in range(8, 12): load(x)
    a(f"s_waitcnt vmcnt({cnt(15-16, 12)})")
    PV(1, 0, 8)
    for x in range(12, 16): load(x)
    a("L_burst_qk:")
    for e in range(4):
        a(f"s_waitcnt vmcnt({cnt(2*e+1, 16)})")
        QK(e)
        if e: RED(e-1)
    RED(3); SM(True)
    a(f"s_sub_u32 s{sIt}, s{sIt}, 1\ns_cmp_eq_u32 s{sIt}, 0\ns_cbranch_scc1 L_drain")
    hist_d = list(a.hist)
    next_off(1)
    a(f"s_cmp_gt_u32 s{sIt}, {B}\ns_nop 1\ns_cbranch_scc1 L_loop")
    a.check_backedge("L_loop")
    a("s_branch L_burst")
    a.check_backedge("L_burst")
    a.check_jump("L_burst", hist_jump)
    a.check_jump("L_burst_qk", hist_jump2)
    a("L_drain:")
    a.hist = hist_d
    x0, x1 = vX, vX+1
    vCo, vCm, vOut, vCw = vTb+8, vTb+12, vTb+13, vTb+14
    RS(0, 16)
    lgC = 6 if pbf16 else 7
    a(f"""
    v_mov_b32 v{x1}, v{vL}
    v_lshrrev_b32 v{vX+2}, 4, v1
    v_and_b32 v{vX+3}, 15, v1
    v_permlane32_swap_b32 v{vL}, v{x1}
    v_lshlrev_b32 v{vX+2}, 3, v{vX+2}
    v_add_f32 v{vL}, v{vL}, v{x1}
    v_lshl_add_u32 v{vX+2}, v{vX+3}, 5, v{vX+2}
    v_mov_b32 v{x1}, v{vL}
    s_lshl_b32 s3, s{sJ}, 12
    v_add_u32 v{vX+2}, s3, v{vX+2}
    v_permlane16_swap_b32 v{vL}, v{x1}
    s_lshl_b32 s3, s{sJ}, 2
    v_add_f32 v{vL}, v{vL}, v{x1}
    v_lshlrev_b32 v{x1}, 4, v1
    v_add_u32 v{vX+3}, s3, v{x1}
    s_mov_b64 exec, 0xf
    ds_write_b32 v{vX+3}, v{vMC} offset:{LDS_M}
    ds_write_b32 v{vX+3}, v{vL} offset:{LDS_L}
    s_mov_b64 exec, -1
    s_lshl_b32 s3, s{sJ}, 4
    v_mov_b32 v{vX+4}, s3
    s_lshl_b32 s3, s{sJ}, 10
    v_add_u32 v{vX+5}, s3, v{x1}
    s_and_b32 s3, s{sSl}, 7
    s_lshl_b32 s3, s3, 2
    s_add_u32 s3, s3, s{sJ}
    s_lshr_b32 s44, s3, 3
    s_and_b32 s45, s3, 7
    s_lshl_b32 s39, s{sHead}, 2
    s_add_u32 s39, s39, s44
    v_lshrrev_b32 v{vX+6}, 3, v1
    v_and_b32 v{vX+7}, 7, v1
    v_lshlrev_b32 v{vCo}, {lgRB}, v{vX+6}
    v_lshl_add_u32 v{vCo}, v{vX+7}, {lgC-3}, v{vCo}
    s_lshl_b32 s3, s39, {lgRB+5}
    s_lshl_b32 s46, s45, {lgC}
    s_add_u32 s3, s3, s46
    s_add_u32 s3, s3, {DA_OFF}
    v_add_u32 v{vCo}, s3, v{vCo}
    s_lshl_b32 s3, s39, 12
    s_add_u32 s3, s3, {ML_OFF}
    v_lshlrev_b32 v{vCm}, 7, v{vX+6}
    v_add_u32 v{vCm}, s3, v{vCm}
    v_and_b32 v{vCw}, 31, v1
    v_lshlrev_b32 v{vCw}, 7, v{vCw}
    v_add_u32 v{vCw}, s3, v{vCw}
    v_add_u32 v{vCo+1}, {8*RB}, v{vCo}
    v_add_u32 v{vCo+2}, {16*RB}, v{vCo}
    v_add_u32 v{vCo+3}, {24*RB}, v{vCo}
    s_lshr_b32 s3, s44, 1
    s_lshl_b32 s3, s3, 13
    s_lshl_b32 s46, s{sHead}, 10
    s_add_u32 s3, s3, s46
    s_and_b32 s46, s44, 1
    s_lshl_b32 s46, s46, 9
    s_add_u32 s3, s3, s46
    s_lshl_b32 s46, s45, 6
    s_add_u32 s3, s3, s46
    v_lshrrev_b32 v{vOut}, 4, v1
    v_lshlrev_b32 v{vOut}, 1, v{vOut}
    v_lshl_add_u32 v{vOut}, v{vX+7}, 3, v{vOut}
    v_add_u32 v{vOut}, s3, v{vOut}
    s_mov_b32 s{sFb}, 0
    """)
    if dry:
        a(f"""
        s_cmp_lt_u32 s{sSl}, {32-C}
        s_cbranch_scc1 L_dry_done
        s_mov_b32 s{sFb}, 1
        s_mov_b64 s[56:57], 0
        s_mov_b64 s[58:59], 0
        s_mov_b64 s[60:61], 0
        s_mov_b64 s[62:63], 0
        s_branch L_poll
        L_dry_done:
        """)
    a(f"""
    s_mov_b64 s[56:57], -1
    s_mov_b64 s[58:59], -1
    s_mov_b64 s[60:61], -1
    s_mov_b64 s[62:63], -1
    s_waitcnt vmcnt({cnt(11, 16)})
    """)
    vW = vK
    def REDUCE(h):
        X = lambda dd, q: vA + 4*(8*h + dd) + q
        for dd in range(4):
            for q in range(4): a(f"v_permlane32_swap_b32 v{X(dd,q)}, v{X(dd+4,q)}")
        for dd in range(4):
            for q in (0, 2): a(f"v_pk_add_f32 v[{X(dd,q)}:{X(dd,q)+1}], v[{X(dd,q)}:{X(dd,q)+1}], v[{X(dd+4,q)}:{X(dd+4,q)+1}]")
        for dd in range(2):
            for q in range(4): a(f"v_permlane16_swap_b32 v{X(dd,q)}, v{X(dd+2,q)}")
        for q in range(4):
            w = vW + 8*h + 2*q
            a(f"v_add_f32 v{w}, v{X(0,q)}, v{X(2,q)}\nv_add_f32 v{w+1}, v{X(1,q)}, v{X(3,q)}")
            a(f"ds_write_b64 v{vX+2}, v[{w}:{w+1}] offset:{LDS_O + q*1024 + h*512}")
    PV(0, 0, 8)
    REDUCE(0)
    a("s_waitcnt vmcnt(0)")
    PV(1, 0, 8)
    stamp(3)
    REDUCE(1)
    a(f"""
    s_cmp_eq_u32 s{sSt}, 0
    s_cbranch_scc1 L_chk_ok
    s_cmp_lt_u32 s{sSt}, 3
    s_cbranch_scc1 L_chk
    """)
    if dclear:
        a(f"s_cmp_lg_u32 s{sSt}, 5\ns_cbranch_scc1 L_clr_done")
        CLEAR(vS)
        a("s_waitcnt vmcnt(0)\nL_clr_done:")
    a(f"""
    s_mov_b32 s52, s54
    s_mov_b32 s53, 0
    s_waitcnt lgkmcnt(0)
    s_atomic_cmpswap s[52:53], s[16:17], 0x0 glc
    s_waitcnt lgkmcnt(0)
    s_cmp_eq_u32 s52, 0
    s_cselect_b32 s{sTag}, s54, s52
    """)
    flag_store()
    a(f"""
    s_cmp_lt_u32 s{sSl}, {32-C}
    s_cbranch_scc1 L_chk_ok
    L_chk:
    global_load_dword v{vNo+1}, v{vFl}, s[18:19] offset:128 sc1
    s_waitcnt vmcnt(0)
    v_cmp_ne_u32 vcc, s{sTag}, v{vNo+1}
    s_cbranch_vccnz L_chk
    L_chk_ok:
    s_waitcnt lgkmcnt(0)
    """)
    stamp(4)
    a(f"""
    s_barrier
    """)
    if mle:
        a(f"""
        s_cmp_lt_u32 s{sSl}, {32-C}
        s_cbranch_scc1 L_nomle
        s_mov_b32 exec_hi, 0
        global_load_dword v{vV+16}, v{vCw}, s[18:19] sc1
        s_mov_b64 exec, -1
        L_nomle:
        """)
    a(f"""
    ds_read_b128 v[{vS}:{vS+3}], v{vX+4} offset:{LDS_M}
    ds_read_b128 v[{vS+4}:{vS+7}], v{vX+4} offset:{LDS_L}
    """)
    for w in range(4):
        a(f"ds_read_b128 v[{vV+4*w}:{vV+4*w+3}], v{vX+5} offset:{LDS_O + w*4096}")
    if stamps: a("s_waitcnt lgkmcnt(0)")
    a(f"""
    s_waitcnt lgkmcnt(4)
    v_max_f32 v{vM}, v{vS}, v{vS+1}
    v_max3_f32 v{vM}, v{vM}, v{vS+2}, v{vS+3}
    """)
    for w in range(4): a(f"v_sub_f32 v{vS+w}, v{vS+w}, v{vM}")
    for w in range(4): a(f"v_exp_f32 v{vS+w}, v{vS+w}")
    a(f"s_waitcnt lgkmcnt(3)")
    for t in (0, 2): a(f"v_pk_mul_f32 v[{vW+t}:{vW+t+1}], v[{vV+t}:{vV+t+1}], v[{vS}:{vS+1}] op_sel_hi:[1,0]")
    for w in range(1, 4):
        a(f"s_waitcnt lgkmcnt({3-w})")
        for t in range(4): a(f"v_fmac_f32 v{vW+t}, v{vS+w}, v{vV+4*w+t}")
    if pbf16:
        a(f"""
        v_cvt_pk_bf16_f32 v{vW}, v{vW}, v{vW+1}
        v_cvt_pk_bf16_f32 v{vW+1}, v{vW+2}, v{vW+3}
        v_min_u32 v{vW}, -2, v{vW}
        v_min_u32 v{vW+1}, -2, v{vW+1}
        global_store_dwordx2 v{vPo}, v[{vW}:{vW+1}], s[18:19] sc1
        """)
    else:
        for t in range(4): a(f"v_min_u32 v{vW+t}, -2, v{vW+t}")
        a(f"global_store_dwordx4 v{vPo}, v[{vW}:{vW+3}], s[18:19] {ppol}")
    a(f"v_mul_f32 v{vM+1}, v{vS}, v{vS+4}")
    for w in range(1, 4): a(f"v_fmac_f32 v{vM+1}, v{vS+w}, v{vS+4+w}")
    a(f"""
    v_min_u32 v{vM}, -2, v{vM}
    v_min_u32 v{vM+1}, -2, v{vM+1}
    v_mov_b32 v{vM+2}, v{vM}
    v_mov_b32 v{vM+3}, v{vM+1}
    s_mov_b64 exec, 0xff
    global_store_dwordx4 v{vPm}, v[{vM}:{vM+3}], s[18:19] {ppol}
    """)
    stamp(5)
    a(f"""
    s_cmp_lt_u32 s{sSl}, {32-C}
    s_cbranch_scc1 L_fin
    L_poll:
    """)
    vO, vML = vV, vV+16
    a.lines.pop()
    def poll_round():
        for i in range(4):
            a(f"s_mov_b64 exec, s[{56+2*i}:{57+2*i}]")
            if PD == 1: a(f"s_cbranch_execz L_skip{i}")
            if pbf16: a(f"global_load_dwordx2 v[{vO+4*i}:{vO+4*i+1}], v{vCo+i}, s[18:19] sc1")
            else: a(f"global_load_dwordx4 v[{vO+4*i}:{vO+4*i+3}], v{vCo+i}, s[18:19] sc1")
            a(f"global_load_dwordx2 v[{vML+2*i}:{vML+2*i+1}], v{vCm}, s[18:19] offset:{1024*i} sc1")
            if PD == 1: a(f"L_skip{i}:")
    if mlfirst:
        if ml1: a(f"s_cmp_lg_u32 s{sJ}, 0\ns_cbranch_scc1 L_pml_done")
        a(f"""
        s_mov_b32 exec_lo, -1
        s_mov_b32 exec_hi, 0
        {"s_waitcnt vmcnt(2)" if mle else ""}
        {"s_branch L_pml1" if mle else ""}
        L_pml:
        global_load_dword v{vML}, v{vCw}, s[18:19] sc1
        s_waitcnt vmcnt(0)
        L_pml1:
        v_cmp_eq_u32 vcc, -1, v{vML}
        s_and_b64 exec, exec, vcc
        s_bcnt1_i32_b64 s3, exec
        s_cmp_gt_u32 s3, {mlk}
        s_cbranch_scc1 L_pml
        """)
        if ml1: a("L_pml_done:\ns_barrier")
    for k in range(PD - 1):
        poll_round()
        a(f"s_sleep {psl}")
    a("L_poll:")
    poll_round()
    if dry:
        a(f"s_mov_b64 exec, -1\ns_cmp_eq_u32 s{sFb}, 1\ns_cbranch_scc1 L_nowait\ns_waitcnt vmcnt(0)\nL_nowait:")
    else:
        a(f"s_mov_b64 exec, -1\ns_waitcnt vmcnt({8*(PD-1)})")
    for i in range(4):
        if pbf16:
            a(f"""
            v_max3_u32 v{vT+2}, v{vO+4*i}, v{vO+4*i+1}, v{vML+2*i}
            v_max_u32 v{vT+2}, v{vT+2}, v{vML+2*i+1}
            """)
        else:
            a(f"""
            v_max3_u32 v{vT+2}, v{vO+4*i}, v{vO+4*i+1}, v{vO+4*i+2}
            v_max3_u32 v{vT+3}, v{vO+4*i+3}, v{vML+2*i}, v{vML+2*i+1}
            v_max_u32 v{vT+2}, v{vT+2}, v{vT+3}
            """)
        a(f"v_cmp_eq_u32 s[{56+2*i}:{57+2*i}], -1, v{vT+2}")
    a(f"""
    s_or_b64 s[64:65], s[56:57], s[58:59]
    s_or_b64 s[66:67], s[60:61], s[62:63]
    s_or_b64 s[64:65], s[64:65], s[66:67]
    """)
    if dry:
        a(f"s_cselect_b32 s3, 1, 0\ns_cmp_gt_u32 s3, s{sFb}")
    if psleep:
        a(f"s_cbranch_scc0 L_poll_done\ns_sleep {psleep}\ns_branch L_poll\nL_poll_done:")
    else:
        a("s_cbranch_scc1 L_poll")
    a.check_backedge("L_poll")
    if stamps and dry: a(f's_cmp_eq_u32 s{sFb}, 1\ns_cbranch_scc1 L_nost6')
    stamp(6)
    if stamps and dry: a('L_nost6:')
    m = vT; t = vT+1; vF = vS; vR = vS+4; vU = vK+16
    a(f"""
    v_max_f32 v{m}, v{vML}, v{vML+2}
    v_max3_f32 v{m}, v{m}, v{vML+4}, v{vML+6}
    """)
    if pbf16:
        for i in range(4):
            o = vO + 4*i; u = vU + 4*i
            a(f"""
            v_and_b32 v{u+3}, 0xffff0000, v{o+1}
            v_lshlrev_b32 v{u+2}, 16, v{o+1}
            v_and_b32 v{u+1}, 0xffff0000, v{o}
            v_lshlrev_b32 v{u}, 16, v{o}
            """)
    src = vU if pbf16 else vO
    a(f"""
    v_max_f32_dpp v{m}, v{m}, v{m} row_ror:8 row_mask:0xf bank_mask:0xf
    v_mov_b32 v{t}, v{m}
    v_permlane16_swap_b32 v{m}, v{t}
    v_max_f32 v{m}, v{m}, v{t}
    v_mov_b32 v{t}, v{m}
    v_permlane32_swap_b32 v{m}, v{t}
    v_max_f32 v{m}, v{m}, v{t}
    """)
    for i in range(4): a(f"v_sub_f32 v{vF+i}, v{vML+2*i}, v{m}")
    for i in range(4): a(f"v_exp_f32 v{vF+i}, v{vF+i}")
    a(f"v_mul_f32 v{m}, v{vF}, v{vML+1}")
    for k in (0, 2): a(f"v_pk_mul_f32 v[{vR+k}:{vR+k+1}], v[{src+k}:{src+k+1}], v[{vF}:{vF+1}] op_sel_hi:[1,0]")
    for i in range(1, 4):
        a(f"v_fmac_f32 v{m}, v{vF+i}, v{vML+2*i+1}")
        for k in range(4): a(f"v_fmac_f32 v{vR+k}, v{vF+i}, v{src+4*i+k}")
    a(f"""
    v_mov_b32 v{t}, v{m}
    v_permlane32_swap_b32 v{vR}, v{vR+2}
    v_permlane32_swap_b32 v{vR+1}, v{vR+3}
    v_permlane32_swap_b32 v{m}, v{t}
    v_add_f32 v{vR}, v{vR}, v{vR+2}
    v_add_f32 v{vR+1}, v{vR+1}, v{vR+3}
    v_add_f32 v{m}, v{m}, v{t}
    v_mov_b32 v{t}, v{m}
    v_permlane16_swap_b32 v{vR}, v{vR+1}
    v_permlane16_swap_b32 v{m}, v{t}
    v_add_f32 v{vR}, v{vR}, v{vR+1}
    v_add_f32 v{m}, v{m}, v{t}
    v_add_f32_dpp v{vR}, v{vR}, v{vR} row_ror:8 row_mask:0xf bank_mask:0xf
    v_add_f32_dpp v{m}, v{m}, v{m} row_ror:8 row_mask:0xf bank_mask:0xf
    v_rcp_f32 v{m}, v{m}
    s_mov_b32 exec_lo, 0x00ff00ff
    s_mov_b32 exec_hi, 0x00ff00ff
    v_mul_f32 v{vR}, v{vR}, v{m}
    v_cvt_pk_bf16_f32 v{vR}, v{vR}, v{vR}
    """)
    if dry:
        a(f"""
        s_cmp_eq_u32 s{sFb}, 0
        s_cbranch_scc1 L_store
        s_mov_b32 s{sFb}, 0
        s_mov_b64 exec, -1
        s_branch L_dry_done
        L_store:
        """)
    a(f"""
    global_store_short v{vOut}, v{vR}, s[14:15] {opol}
    L_fin:
    """)
    if stamps and PD > 1: a("s_waitcnt vmcnt(0)")
    if stamps:
        a(f"""
        s_mov_b64 exec, -1
        s_cmp_lt_u32 s{sSl}, {32-C}
        s_cbranch_scc0 L_st1
        s_memrealtime s[100:101]
        L_st1:
        s_getreg_b32 s98, hwreg(HW_REG_XCC_ID)
        s_getreg_b32 s99, hwreg(HW_REG_HW_ID)
        s_lshl_b32 s3, s2, 2
        s_add_u32 s3, s3, s{sJ}
        s_lshl_b32 s3, s3, 6
        s_add_u32 s3, s3, 0x20000000
        v_mov_b32 v{x0}, s3
        s_waitcnt lgkmcnt(0)
        """)
        for i in range(7):
            a(f"v_mov_b32 v{vV+2*i}, s{STR[i]}\nv_mov_b32 v{vV+2*i+1}, s{STR[i]+1}")
        a(f"v_mov_b32 v{vV+14}, s98\nv_mov_b32 v{vV+15}, s99\ns_mov_b64 exec, 1")
        for i in range(4):
            a(f"global_store_dwordx4 v{x0}, v[{vV+4*i}:{vV+4*i+3}], s[18:19] offset:{16*i}")
    a("L_end:\ns_endpgm")
    if diag:
        from diag import diag_kernel
        diag_kernel(a, 1024, **diag)
    def kd(name, nv, ns):
        a.raw(f""".amdhsa_kernel {name}
  .amdhsa_next_free_vgpr {nv}
  .amdhsa_next_free_sgpr {ns}
  .amdhsa_accum_offset {min(256,(nv+3)//4*4)}
  .amdhsa_group_segment_fixed_size 0
  .amdhsa_kernarg_size 64
  .amdhsa_user_sgpr_count 2
  .amdhsa_user_sgpr_kernarg_segment_ptr 1
  .amdhsa_system_sgpr_workgroup_id_x 1
  .amdhsa_float_denorm_mode_32 3
.end_amdhsa_kernel""")
    a.raw('.section .rodata,"a"\n.p2align 6')
    kd(KNAME, nvg, 102)
    if diag:
        a.raw(".p2align 6")
        kd("diag_kernel", 64, 32)
    return a.text()

if __name__ == "__main__":
    out = sys.argv[1]
    kw = eval("dict(" + (sys.argv[2] if len(sys.argv) > 2 else "") + ")")
    open(out, "w").write(gen(**kw))
```
